```python
import torch

def _softmax(x, axis=-1):
    return torch.softmax(x, dim=axis)
def _gelu(x):
    return torch.nn.functional.gelu(x, approximate="tanh")
def _silu(x):
    return torch.nn.functional.silu(x)
def _sigmoid(x):
    return torch.sigmoid(x)
def _layernorm(x, axis=-1, eps=1e-5):
    m = x.mean(dim=axis, keepdim=True)
    v = x.var(dim=axis, keepdim=True, unbiased=False)
    return (x - m) / torch.sqrt(v + eps)
def _scatter_add(tgt, idx, src, axis=0):
    return tgt.clone().index_add_(axis, idx, src)
def _segment_sum(src, seg, n):
    out = torch.zeros((n,) + src.shape[1:], dtype=src.dtype)
    return out.index_add_(0, seg, src)
def _pad(x, pw):
    flat = tuple(v for pair in reversed(pw) for v in pair)
    return torch.nn.functional.pad(x, flat)

kernel_name = 'standalone__gqa_block_cached__sampling'

def setup_inputs():

    _w = (lambda a: (lambda t: t.to(torch.bfloat16) if t.is_floating_point() else t)(torch.as_tensor(a)))
    B, Sq, D = 8, 1, 512
    Hq, Hkv, Sk, Dh = 32, 8, 8192, 128
    assert Hq % Hkv == 0, (Hq, Hkv)
    return {
        "x": _w((lambda *s: torch.randn(*s, dtype=torch.bfloat16) * 0.8)(B, Sq, D)),
        "k_cache": _w((lambda *s: torch.randn(*s, dtype=torch.bfloat16) * 0.8)(B, Hkv, Sk, Dh)),
        "v_cache": _w((lambda *s: torch.randn(*s, dtype=torch.bfloat16) * 0.05)(B, Hkv, Sk, Dh)),
        "wq": _w((lambda *s: torch.randn(*s, dtype=torch.bfloat16) * 0.8)(D, Hq * Dh) * (D ** -0.5)),
        "wo": _w((lambda *s: torch.randn(*s, dtype=torch.bfloat16) * 0.05)(Hq * Dh, D) * ((Hq * Dh) ** -0.5)),
    }

def reference(x, k_cache, v_cache, wq, wo):
    B, Sq, D = x.shape
    Hq, Dh = 32, 128
    Hkv = k_cache.shape[1]
    rep = Hq // Hkv
    q = (lambda x, *d: x.permute(*d))((x @ wq).reshape(B, Sq, Hq, Dh), 0, 2, 1, 3)
    k = (lambda x, n, axis: torch.repeat_interleave(x, n, dim=axis))(k_cache, rep, axis=1)
    v = (lambda x, n, axis: torch.repeat_interleave(x, n, dim=axis))(v_cache, rep, axis=1)
    scores = torch.einsum("bhqd,bhkd->bhqk", q, k) * (Dh ** -0.5)
    p = _softmax(scores, axis=-1)
    o = torch.einsum("bhqk,bhkd->bhqd", p, v)
    return (lambda x, *d: x.permute(*d))(o, 0, 2, 1, 3).reshape(B, Sq, Hq * Dh) @ wo
```

```python
import sys, struct, math
KN = "standalone__gqa_block_cached__sampling_kernel"
HDR = open("standalone__gqa_block_cached__sampling.s.ref").read().split("; Override launch")[0] if len(sys.argv) > 0 else ""

Q_OFF, LSE_OFF, ML_OFF, OP_OFF, PS_OFF, ST_OFF = 0x0, 0x10000, 0x20000, 0x40000, 0x100000, 0x800000
L_Q, L_CTL, L_OC, L_OB, L_FIN, L_STG = 0x0, 0x400, 0x800, 0x3000, 0x5000, 0x6000
LDS_BYTES = 0xE000
def f32(x): return struct.unpack("<I", struct.pack("<f", x))[0]
CSCALE = f32((128 ** -0.5) * math.log2(math.e))

def gen(name, stamps=False, flagmode="byte", force=None, spin=20000, ntkv="nt", wopol="", F=8, WOF=2, noclear=False, noprobe=False, wqpol="", xpol="", psleep=1, nowo=False, nopoll=False):
    L = []
    def A(s): L.append("  " + s)
    def LAB(s): L.append(s + ":")
    nst = [0]
    def STAMP(i):
        if stamps:
            A("s_memrealtime s[66:67]")
            A("s_waitcnt lgkmcnt(0)")
            A(f"s_mov_b32 s{70+i}, s66")
    def srd(d, lo, size):
        A(f"s_mov_b32 s{d}, s{lo}"); A(f"s_mov_b32 s{d+1}, s{lo+1}")
        A(f"s_mov_b32 s{d+2}, {size}"); A(f"s_mov_b32 s{d+3}, 0x20000")
    L.append(HDR.rstrip())
    L.append(f"; @launch grid=(256,1,1) block=(512,1,1) lds={LDS_BYTES}")
    L.append('.amdgcn_target "amdgcn-amd-amdhsa--gfx950"\n.text')
    L.append(f".globl {KN}\n.p2align 8\n.type {KN},@function\n{KN}:")
    A("s_cmp_ge_u32 s2, 256")
    A("s_cbranch_scc1 L_end")
    if stamps: A("s_memrealtime s[66:67]")
    A("s_load_dwordx16 s[4:19], s[0:1], 0")
    if stamps:
        for i in range(16): A(f"s_mov_b32 s{70+i}, 0")
    A("v_lshrrev_b32 v1, 6, v0")
    A("v_and_b32 v0, 63, v0")
    A("v_readfirstlane_b32 s44, v1")
    A("s_bfe_u32 s45, s2, 0x10002")
    A("s_and_b32 s46, s2, 3")
    A("s_lshr_b32 s47, s2, 3")
    A("s_lshl2_add_u32 s46, s47, s46")
    A("s_lshl1_add_u32 s47, s46, s45")
    A("v_lshlrev_b32 v2, 4, v0")
    A("s_cmp_ge_u32 s44, 4")
    A("s_cbranch_scc1 L_helper")
    RING = 96
    def R(n, lo=0, cnt=4): return f"v[{RING+4*n+lo}:{RING+4*n+lo+cnt-1}]"
    QV, DB, X, PR, MLR, PD, AS, AC1, AC2, ORUN, MRUN, LRUN = 12, 16, 32, 40, 44, 48, 56, 60, 64, 68, 76, 77
    T0, T1, T2, T3, MU, LU, FB = 78, 79, 80, 81, 82, 83, 84
    PW, MLW = 88, 92
    A("v_lshrrev_b32 v3, 4, v0")
    A("v_lshlrev_b32 v1, 6, v3")
    A("v_bfe_u32 v4, v0, 2, 2")
    A("v_lshl_add_u32 v1, v4, 8, v1")
    A("v_and_b32 v5, 3, v0")
    A("v_lshl_add_u32 v1, v5, 4, v1")
    A("s_lshl_b32 s56, s46, 20")
    A("s_lshl_b32 s57, s44, 18")
    A("s_add_u32 s56, s56, s57")
    A("s_and_b32 s57, s44, 1")
    A("s_xor_b32 s57, s57, s45")
    A("s_lshl_b32 s58, s57, 13")
    A("s_add_u32 s48, s56, s58")
    GO = [0, 4096, 16384, 20480, 32768, 36864, 49152, 53248]
    NG = F // 4
    def offs_all(base):
        for j in range(8): A(f"s_add_u32 s{48+j}, {base}, {GO[j]}")
    def offs(cur, nxt):
        for j in range(8): A(f"s_add_u32 s{48+j}, {nxt if j < NG else cur}, {GO[j]}")
    A("s_mov_b32 s90, s48")
    offs_all("s90")
    A("s_waitcnt lgkmcnt(0)")
    if stamps: A("s_mov_b32 s85, s66")
    srd(32, 6, "0x8000000")
    for n in range(32):
        if n >= F: A(f"s_waitcnt vmcnt({F-1})")
        A(f"buffer_load_dwordx4 {R(n)}, v1, s[32:35], s{48+n//4} offen offset:{(n%4)*1024} {ntkv}")
    srd(36, 6, "0x8000000")
    STAMP(0)
    srd(28, 18, "0x20000000")
    A("v_lshlrev_b32 v6, 8, v3")
    A("v_lshl_add_u32 v6, v5, 6, v6")
    A("v_lshl_add_u32 v6, v4, 4, v6")
    A("v_lshlrev_b32 v7, 3, v3")
    A("v_lshlrev_b32 v8, 3, v0")
    A("v_mov_b32 v9, 0xffff")
    A("v_and_b32 v10, 1, v0")
    A("v_lshlrev_b32 v10, 4, v10")
    A("v_lshlrev_b32 v9, v10, v9")
    A("v_cmp_gt_u32 vcc, 2, v5")
    A("v_mov_b32 v3, v1")
    A("s_nop 0")
    A("v_cndmask_b32 v4, 0, v9, vcc")
    A("v_cndmask_b32 v5, v9, 0, vcc")
    A(f"s_mov_b32 s59, {CSCALE}")
    A("s_mov_b32 s60, 0x01000100")
    A("s_mov_b32 s61, 0x03020302")
    A(f"v_mov_b32 v{MRUN}, 0xff7fffff")
    A(f"v_mov_b32 v{LRUN}, 0")
    for i in range(8): A(f"v_mov_b32 v{ORUN+i}, 0")
    A("v_mov_b32 v9, 0")
    A("s_barrier")
    A("s_barrier")
    A(f"ds_read_b128 v[{QV}:{QV+3}], v2 offset:{L_Q}")
    A(f"ds_read_b32 v10, v9 offset:{L_CTL+8}")
    A("s_waitcnt lgkmcnt(0)")
    A("v_readfirstlane_b32 s62, v10")
    STAMP(1)
    A("s_and_b32 s63, s62, 1")
    A("s_lshr_b32 s62, s62, 1")
    A("s_and_b32 s62, s62, 1")
    A("s_lshl_b32 s64, s44, 2")
    A("s_lshl1_add_u32 s65, s46, s57")
    A("s_lshl4_add_u32 s65, s65, s64")
    A("s_lshl1_add_u32 s68, s46, s62")
    A("s_lshl4_add_u32 s68, s68, s64")
    A("s_mov_b32 s69, 0")
    def pload():
        A("s_lshl_b32 s86, s68, 10")
        A(f"s_add_u32 s86, s86, {PS_OFF}")
        A("s_lshl_b32 s87, s68, 5")
        A(f"s_add_u32 s87, s87, {ML_OFF}")
        A(f"buffer_load_dwordx4 v[{PR}:{PR+3}], v6, s[28:31], s86 offen sc1")
        A(f"buffer_load_dwordx2 v[{MLR}:{MLR+1}], v7, s[28:31], s87 offen sc1")
    def dpp3(n):
        k, t = n // 4, n % 4
        d = DB + 4 * (n % 4)
        var = f"row_mask:0xf bank_mask:{1<<t:#x}"
        A(f"v_add_f32_dpp v{X+k}, v{d+(t+1)%4}, v{d+t} row_ror:12 {var}")
        A(f"v_add_f32_dpp v{X+k}, v{d+(t+2)%4}, v{X+k} row_ror:8 {var}")
        A(f"v_add_f32_dpp v{X+k}, v{d+(t+3)%4}, v{X+k} row_ror:4 {var}")
    def ldtile(m, curv):
        n = m % 32
        if m < 32: A(f"buffer_load_dwordx4 {R(n)}, {curv}, s[32:35], s{48+n//4} offen offset:{(n%4)*1024} {ntkv}")
        else:      A(f"buffer_load_dwordx4 {R(n)}, v3, s[36:39], s{48+n//4} offen offset:{(n%4)*1024} {ntkv}")
    A("s_lshl_b32 s58, s63, 13")
    A("s_add_u32 s91, s56, s58")
    A("s_add_u32 s91, s91, 0x10000")
    offs("s90", "s91")
    for n in range(32):
        d = DB + 4 * (n % 4)
        if n == 0: A(f"s_waitcnt vmcnt({F})")
        A(f"v_mfma_f32_16x16x32_bf16 v[{d}:{d+3}], {R(n)}, v[{QV}:{QV+3}], 0")
        if n < F:
            A(f"s_waitcnt vmcnt({F-1})")
            ldtile(32 + n, "v1")
        else:
            A("s_nop 1")
        if n >= 2: dpp3(n - 2)
    A("s_branch L_kpost")
    LAB("L_kunit")
    A("s_mov_b32 s90, s91")
    A("s_cmp_lt_u32 s69, 3")
    A("s_cbranch_scc0 L_k3")
    A("s_add_u32 s91, s91, 0x10000")
    A("s_branch L_kgo")
    LAB("L_k3")
    A("s_lshl_b32 s58, s62, 13")
    A("s_add_u32 s91, s56, s58")
    A("s_mov_b32 s36, s8"); A("s_mov_b32 s37, s9")
    A("v_mov_b32 v3, v2")
    pload()
    LAB("L_kgo")
    offs("s90", "s91")
    for n in range(32):
        A(f"s_waitcnt vmcnt({F-1})")
        d = DB + 4 * (n % 4)
        A(f"v_mfma_f32_16x16x32_bf16 v[{d}:{d+3}], {R(n)}, v[{QV}:{QV+3}], 0")
        ldtile(n + F, "v1")
        if n >= 2: dpp3(n - 2)
    LAB("L_kpost")
    A("s_nop 3")
    dpp3(30)
    A("s_nop 1")
    dpp3(31)
    def allred(op, t0, t1):
        A("s_nop 1")
        A(f"{op}_dpp v{t0}, v{t0}, v{t0} row_ror:4 row_mask:0xf bank_mask:0xf")
        A("s_nop 1")
        A(f"{op}_dpp v{t0}, v{t0}, v{t0} row_ror:8 row_mask:0xf bank_mask:0xf")
        A(f"v_mov_b32 v{t1}, v{t0}")
        A("s_nop 1")
        A(f"v_permlane16_swap_b32 v{t0}, v{t1}")
        A(f"{op} v{t0}, v{t0}, v{t1}")
        A(f"v_mov_b32 v{t1}, v{t0}")
        A("s_nop 1")
        A(f"v_permlane32_swap_b32 v{t0}, v{t1}")
        A(f"{op} v{t0}, v{t0}, v{t1}")
    A(f"v_max3_f32 v{T0}, v{X}, v{X+1}, v{X+2}")
    A(f"v_max3_f32 v{T0}, v{T0}, v{X+3}, v{X+4}")
    A(f"v_max3_f32 v{T0}, v{T0}, v{X+5}, v{X+6}")
    A(f"v_max_f32 v{T0}, v{T0}, v{X+7}")
    allred("v_max_f32", T0, T1)
    A(f"v_mul_f32 v{MLW}, s59, v{T0}")
    for k in range(8): A(f"v_fma_f32 v{X+k}, v{X+k}, s59, -v{MLW}")
    for k in range(8): A(f"v_exp_f32 v{X+k}, v{X+k}")
    A("s_lshl_b32 s86, s65, 10")
    A(f"s_add_u32 s86, s86, {PS_OFF}")
    for kp in range(4): A(f"v_cvt_pk_bf16_f32 v{PW+kp}, v{X+2*kp}, v{X+2*kp+1}")
    A(f"buffer_store_dwordx4 v[{PW}:{PW+3}], v2, s[28:31], s86 offen sc1")
    A(f"v_add_f32 v{T2}, v{X}, v{X+1}")
    A(f"v_add_f32 v{T3}, v{X+2}, v{X+3}")
    A(f"v_add_f32 v{T2}, v{T2}, v{X+4}")
    A(f"v_add_f32 v{T3}, v{T3}, v{X+5}")
    A(f"v_add_f32 v{T2}, v{T2}, v{X+6}")
    A(f"v_add_f32 v{T3}, v{T3}, v{X+7}")
    A(f"v_add_f32 v{MLW+1}, v{T2}, v{T3}")
    allred("v_add_f32", MLW + 1, T1)
    A("s_lshl_b32 s87, s65, 5")
    A(f"s_add_u32 s87, s87, {ML_OFF}")
    A("s_mov_b64 exec, 15")
    A(f"buffer_store_dwordx2 v[{MLW}:{MLW+1}], v8, s[28:31], s87 offen sc1")
    A("s_mov_b64 exec, -1")
    A("s_add_u32 s69, s69, 1")
    A("s_lshl1_add_u32 s65, s46, s63")
    A("s_lshl4_add_u32 s65, s65, s64")
    A("s_add_u32 s65, s65, s69")
    if stamps:
        A("s_cmp_eq_u32 s69, 1"); A("s_cbranch_scc0 L_nst2"); STAMP(2); LAB("L_nst2")
    A("s_cmp_lt_u32 s69, 4")
    A("s_cbranch_scc1 L_kunit")
    STAMP(3)
    A("s_mov_b32 s69, 0")
    A("s_mov_b32 s88, 0")
    A("s_mov_b32 s32, s8"); A("s_mov_b32 s33, s9")
    LAB("L_vunit")
    A(f"v_max3_u32 v{T0}, v{PR}, v{PR+1}, v{PR+2}")
    A(f"v_max3_u32 v{T0}, v{T0}, v{PR+3}, v{MLR}")
    A(f"v_max_u32 v{T0}, v{T0}, v{MLR+1}")
    A(f"v_cmp_eq_u32 vcc, -1, v{T0}")
    A("s_cbranch_vccnz L_pslow")
    LAB("L_pok")
    for kp in range(4):
        A(f"v_perm_b32 v{PD+2*kp}, v{PR+kp}, v{PR+kp}, s60")
        A(f"v_perm_b32 v{PD+2*kp+1}, v{PR+kp}, v{PR+kp}, s61")
    A(f"v_max_f32 v{T0}, v{MRUN}, v{MLR}")
    A(f"v_sub_f32 v{T1}, v{MRUN}, v{T0}")
    A(f"v_sub_f32 v{FB}, v{MLR}, v{T0}")
    A(f"v_exp_f32 v{T1}, v{T1}")
    A(f"v_exp_f32 v{FB}, v{FB}")
    A(f"v_mov_b32 v{MRUN}, v{T0}")
    A(f"v_mul_f32 v{LRUN}, v{LRUN}, v{T1}")
    A(f"v_fmac_f32 v{LRUN}, v{MLR+1}, v{FB}")
    for i in range(8): A(f"v_mul_f32 v{ORUN+i}, v{ORUN+i}, v{T1}")
    A("s_add_u32 s68, s68, 1")
    A("s_mov_b32 s90, s91")
    A("s_add_u32 s91, s91, 0x10000")
    A("s_cmp_lt_u32 s69, 3")
    A("s_cbranch_scc1 L_vnext")
    A("s_mov_b32 s38, 0")
    A("s_branch L_vgo")
    LAB("L_vnext")
    pload()
    LAB("L_vgo")
    offs("s90", "s91")
    def abuild(n):
        k, t = n // 4, n % 4
        a = AS + 2 * (n % 2)
        A(f"v_and_b32_dpp v{a}, v{PD+k}, v4 quad_perm:[{t},{t},{t},{t}] row_mask:0xf bank_mask:0xf")
        A(f"v_and_b32_dpp v{a+1}, v{PD+k}, v5 quad_perm:[{t},{t},{t},{t}] row_mask:0xf bank_mask:0xf")
    abuild(0)
    for n in range(32):
        a = AS + 2 * (n % 2)
        if n + 1 < 32: abuild(n + 1)
        else: A("s_nop 0")
        A(f"s_waitcnt vmcnt({F-1})")
        c1 = "0" if n == 0 else f"v[{AC1}:{AC1+3}]"
        c2 = "0" if n == 0 else f"v[{AC2}:{AC2+3}]"
        A(f"v_mfma_f32_16x16x16_bf16 v[{AC1}:{AC1+3}], v[{a}:{a+1}], {R(n,0,2)}, {c1}")
        A(f"v_mfma_f32_16x16x16_bf16 v[{AC2}:{AC2+3}], v[{a}:{a+1}], {R(n,2,2)}, {c2}")
        ldtile(n + F, "v2")
    A("s_add_u32 s69, s69, 1")
    A("s_nop 6")
    for i in range(8): A(f"v_fmac_f32 v{ORUN+i}, v{AC1+i}, v{FB}")
    A("s_cmp_lt_u32 s69, 4")
    A("s_cbranch_scc1 L_vunit")
    STAMP(4)
    if stamps: A("s_mov_b32 s80, s88")
    A(f"s_mul_i32 s58, s44, 2560")
    A("v_lshlrev_b32 v9, 5, v0")
    A("v_add_u32 v10, s58, v9")
    A("v_add_u32 v11, s58, v8")
    A(f"ds_write_b128 v10, v[{ORUN}:{ORUN+3}] offset:{L_OC}")
    A(f"ds_write_b128 v10, v[{ORUN+4}:{ORUN+7}] offset:{L_OC+16}")
    A(f"ds_write_b64 v11, v[{MRUN}:{LRUN}] offset:{L_OC+2048}")
    A("s_waitcnt lgkmcnt(0)")
    A("s_barrier")
    A("s_cmp_eq_u32 s44, 0")
    A("s_cbranch_scc0 L_sdone")
    for w in range(4):
        A(f"ds_read_b64 v[{16+2*w}:{17+2*w}], v8 offset:{L_OC+w*2560+2048}")
    for w in range(4):
        A(f"ds_read_b128 v[{32+8*w}:{35+8*w}], v9 offset:{L_OC+w*2560}")
        A(f"ds_read_b128 v[{36+8*w}:{39+8*w}], v9 offset:{L_OC+w*2560+16}")
    A("s_lshl_b32 s86, s47, 11")
    A(f"s_add_u32 s86, s86, {OP_OFF}")
    A("s_lshr_b32 s87, s47, 2")
    A("s_lshl_b32 s87, s87, 6")
    A("s_and_b32 s58, s47, 3")
    A("s_lshl2_add_u32 s87, s58, s87")
    A(f"s_add_u32 s87, s87, {LSE_OFF}")
    A("s_waitcnt lgkmcnt(8)")
    A("v_max3_f32 v24, v16, v18, v20")
    A("v_max_f32 v24, v24, v22")
    for w in range(4): A(f"v_sub_f32 v{16+2*w}, v{16+2*w}, v24")
    for w in range(4): A(f"v_exp_f32 v{16+2*w}, v{16+2*w}")
    A("s_nop 0")
    A("v_mul_f32 v25, v16, v17")
    for w in range(1, 4): A(f"v_fmac_f32 v25, v{16+2*w}, v{17+2*w}")
    A("v_rcp_f32 v26, v25")
    A("v_log_f32 v27, v25")
    A("s_nop 0")
    for w in range(4): A(f"v_mul_f32 v{16+2*w}, v{16+2*w}, v26")
    A("v_add_f32 v27, v27, v24")
    A("s_waitcnt lgkmcnt(0)")
    for i in range(8): A(f"v_mul_f32 v{32+i}, v{32+i}, v16")
    for w in range(1, 4):
        for i in range(8): A(f"v_fmac_f32 v{32+i}, v{32+8*w+i}, v{16+2*w}")
    A("buffer_store_dwordx4 v[32:35], v9, s[28:31], s86 offen sc1")
    A("buffer_store_dwordx4 v[36:39], v9, s[28:31], s86 offen offset:16 sc1")
    A("s_mov_b32 exec_lo, 0x00010001"); A("s_mov_b32 exec_hi, 0x00010001")
    A("buffer_store_dword v27, v0, s[28:31], s87 offen sc1")
    A("s_mov_b64 exec, -1")
    STAMP(5)
    LAB("L_sdone")
    A("s_branch L_fin")
    LAB("L_pslow")
    A("s_add_u32 s88, s88, 1")
    A(f"s_cmp_gt_u32 s88, {spin}")
    A("s_cbranch_scc1 L_pok")
    A("s_sleep 2")
    pload()
    A("s_waitcnt vmcnt(0)")
    A("s_branch L_vunit")

    LAB("L_helper")
    A("s_setprio 3")
    A("v_lshrrev_b32 v3, 4, v0")
    A("v_and_b32 v4, 15, v0")
    A("v_lshlrev_b32 v5, 8, v3")
    A("v_lshl_add_u32 v5, v4, 3, v5")
    A("v_lshrrev_b32 v6, 1, v0")
    A("v_and_b32 v7, 1, v0")
    A("v_lshlrev_b32 v7, 4, v7")
    A("s_getreg_b32 s57, hwreg(HW_REG_XCC_ID)")
    A("s_bfe_u32 s57, s57, 0x10002")
    A("s_bfe_u32 s58, s46, 0x10001")
    A("s_waitcnt lgkmcnt(0)")
    if stamps: A("s_mov_b32 s85, s66")
    srd(28, 18, "0x20000000")
    A("s_cmp_eq_u32 s44, 4"); A("s_cbranch_scc1 L_h0")
    A("s_cmp_eq_u32 s44, 7"); A("s_cbranch_scc1 L_h3")
    A("s_cmp_eq_u32 s44, 5")
    A("s_cselect_b32 s36, s6, s8")
    A("s_cselect_b32 s37, s7, s9")
    A("s_lshl_b32 s48, s46, 20")
    A("s_lshl_b32 s49, s45, 12")
    A("s_add_u32 s48, s48, s49")
    A(f"s_add_u32 s48, s48, {(1<<20) - 16384}")
    A("s_add_u32 s49, s48, 2048")
    if not noprobe: A("s_load_dword s50, s[36:37], s49")
    A("s_waitcnt lgkmcnt(0)")
    A("s_mov_b32 s52, 0"); A("s_mov_b32 s53, 0")
    for i, par in enumerate([] if noprobe else [0, 1, 1, 0]):
        A(f"s_add_u32 s49, s48, {par*8192 + i*256}")
        A("s_memtime s[62:63]")
        A("s_waitcnt lgkmcnt(0)")
        A("s_load_dword s50, s[36:37], s49")
        A("s_waitcnt lgkmcnt(0)")
        A("s_memtime s[64:65]")
        A("s_waitcnt lgkmcnt(0)")
        A("s_sub_u32 s51, s64, s62")
        A(f"s_add_u32 s{52+par}, s{52+par}, s51")
    if stamps:
        A("s_mov_b32 s80, s52"); A("s_mov_b32 s81, s53")
    A("s_cmp_gt_u32 s52, s53")
    A("s_cselect_b32 s50, 1, 0")
    A("s_xor_b32 s50, s50, s58")
    A("s_xor_b32 s50, s50, s57")
    A("s_sub_u32 s51, s44, 5")
    A("s_lshl_b32 s51, s51, 2")
    A("v_mov_b32 v8, s51")
    A("v_mov_b32 v9, s50")
    A(f"ds_write_b32 v8, v9 offset:{L_CTL}")
    A("s_waitcnt lgkmcnt(0)")
    STAMP(0)
    A("s_barrier")
    A("s_branch L_hwait2")
    LAB("L_h3")
    for i in range(4): A(f"v_mov_b32 v{8+i}, -1")
    if noclear: A("s_mov_b32 s30, 0")
    A("s_lshl_b32 s48, s47, 14")
    A(f"s_add_u32 s48, s48, {PS_OFF}")
    for i in range(16):
        A(f"buffer_store_dwordx4 v[8:11], v2, s[28:31], s48 offen offset:{(i%4)*1024} sc1")
        if i % 4 == 3: A("s_add_u32 s48, s48, 4096")
    A("s_lshl_b32 s48, s47, 11")
    A(f"s_add_u32 s48, s48, {OP_OFF}")
    A("buffer_store_dwordx4 v[8:11], v2, s[28:31], s48 offen sc1")
    A("buffer_store_dwordx4 v[8:11], v2, s[28:31], s48 offen offset:1024 sc1")
    A("s_lshl_b32 s48, s47, 9")
    A(f"s_add_u32 s48, s48, {ML_OFF}")
    A("s_mov_b32 exec_hi, 0")
    A("buffer_store_dwordx4 v[8:11], v2, s[28:31], s48 offen sc1")
    A("s_lshr_b32 s48, s47, 2")
    A("s_lshl_b32 s48, s48, 6")
    A("s_and_b32 s49, s47, 3")
    A("s_lshl2_add_u32 s48, s49, s48")
    A(f"s_add_u32 s48, s48, {LSE_OFF}")
    A("s_mov_b64 exec, 15")
    A("buffer_store_dword v8, v2, s[28:31], s48 offen sc1")
    A("s_mov_b64 exec, -1")
    A("s_waitcnt vmcnt(0)")
    if noclear: A("s_mov_b32 s30, 0x20000000")
    STAMP(0)
    A("s_barrier")
    A("s_branch L_hwait2")
    LAB("L_h0")
    srd(36, 10, "0x400000")
    srd(40, 4, "0x2000")
    A("s_and_b32 s48, s2, 7")
    A("s_lshl_b32 s48, s48, 5")
    A("s_lshr_b32 s49, s2, 3")
    A("s_add_u32 s48, s48, s49")
    A("s_lshl_b32 s48, s48, 5")
    A("v_lshl_add_u32 v8, v6, 13, v7")
    A("s_mov_b32 s49, s48")
    for i in range(16):
        A(f"s_mov_b32 m0, {L_STG + i*1024}")
        if i: A(f"s_add_u32 s49, s49, {32*8192}")
        else: A("s_nop 0")
        A(f"buffer_load_dwordx4 v8, s[36:39], s49 offen {wqpol} lds")
    A("v_and_b32 v9, 7, v0")
    A("v_lshlrev_b32 v9, 10, v9")
    A("v_lshl_add_u32 v9, v3, 4, v9")
    for s in range(16):
        A(f"buffer_load_dwordx4 v[{96+4*s}:{99+4*s}], v9, s[40:43], 0 offen offset:{64*s} {xpol}")
    A("v_lshlrev_b32 v10, 13, v4")
    A("v_lshl_add_u32 v10, v3, 3, v10")
    A("v_cmp_gt_u32 vcc, 8, v4")
    A("s_mov_b64 s[50:51], vcc")
    A("s_waitcnt vmcnt(0)")
    STAMP(0)
    for s in range(16):
        A(f"ds_read_b64_tr_b16 v[{160+4*s}:{161+4*s}], v5 offset:{L_STG + s*1024}")
        A(f"ds_read_b64_tr_b16 v[{162+4*s}:{163+4*s}], v5 offset:{L_STG + s*1024 + 128}")
        if s == 6:
            pass
    for s in range(16):
        rem = 2 * (15 - s)
        A(f"s_waitcnt lgkmcnt({min(rem, 15)})")
        c = "0" if s == 0 else "v[12:15]"
        A(f"v_mfma_f32_16x16x32_bf16 v[12:15], v[{160+4*s}:{163+4*s}], v[{96+4*s}:{99+4*s}], {c}")
    A("s_nop 7")
    A("v_cvt_pk_bf16_f32 v16, v12, v13")
    A("v_cvt_pk_bf16_f32 v17, v14, v15")
    A("s_mov_b64 exec, s[50:51]")
    A(f"buffer_store_dwordx2 v[16:17], v10, s[28:31], s48 offen offset:{Q_OFF} sc1")
    A("s_mov_b64 exec, -1")
    srd(36, 16, "256")
    A("v_mov_b32 v11, 0")
    A("v_lshlrev_b32 v12, 2, v0")
    A("v_and_b32 v13, 3, v0")
    A("v_lshlrev_b32 v13, 8, v13")
    A("v_lshl_add_u32 v13, v3, 6, v13")
    A("v_bfe_u32 v14, v0, 2, 2")
    A("v_lshl_add_u32 v13, v14, 4, v13")
    A("s_lshr_b32 s52, s46, 1")
    A("s_lshl_b32 s52, s52, 10")
    A("s_waitcnt vmcnt(0)")
    STAMP(1)
    A("s_barrier")
    A(f"ds_read_b64 v[16:17], v11 offset:{L_CTL}")
    A("s_lshl_b32 s53, s57, 3")
    A("s_or_b32 s53, s53, 1")
    A("s_waitcnt lgkmcnt(0)")
    A("v_lshlrev_b32 v16, 1, v16")
    A("v_lshl_or_b32 v16, v17, 2, v16")
    A("v_or_b32 v16, s53, v16")
    A("s_mov_b64 exec, 1")
    if flagmode == "byte":
        A("buffer_store_byte v16, v11, s[36:39], s2 offen sc1")
    else:
        A("s_and_b32 s54, s2, 3"); A("s_lshl_b32 s54, s54, 3")
        A("v_lshlrev_b32 v16, s54, v16")
        A("s_and_b32 s54, s2, 0xfc")
        A("buffer_atomic_or v16, v11, s[36:39], s54 offen sc1")
    A("s_mov_b64 exec, -1")
    STAMP(2)
    A("s_mov_b32 s54, 0")
    A("s_mov_b32 s55, 0x01010101")
    LAB("L_poll")
    A("buffer_load_dword v18, v12, s[36:39], 0 offen sc1")
    A("s_waitcnt vmcnt(0)")
    A("v_and_b32 v19, s55, v18")
    A("v_cmp_ne_u32 vcc, s55, v19")
    A("s_cbranch_vccz L_polled")
    A("s_add_u32 s54, s54, 1")
    A(f"s_cmp_gt_u32 s54, {spin}")
    A("s_cbranch_scc1 L_polled")
    if nopoll: A("s_branch L_polled")
    A(f"s_sleep {psleep}")
    A("s_branch L_poll")
    LAB("L_polled")
    A(f"buffer_load_dwordx4 v[20:23], v13, s[28:31], s52 offen offset:{Q_OFF} sc1")
    STAMP(3)
    if stamps: A("s_mov_b32 s82, s54")
    for bit, dst in ((1, 60), (2, 61)):
        A(f"s_mov_b32 s{dst}, 0")
        for j in range(4):
            A(f"v_and_b32 v19, {1 << (8*j+bit):#x}, v18")
            A("v_cmp_ne_u32 vcc, 0, v19")
            A("s_bcnt1_i32_b64 s62, vcc")
            A(f"s_add_u32 s{dst}, s{dst}, s62")
    if stamps:
        A("s_mov_b32 s80, s60"); A("s_mov_b32 s81, s61")
    A("s_andn2_b32 s62, s2, 4")
    A("s_lshr_b32 s63, s62, 2")
    A("v_readlane_b32 s64, v18, s63")
    A("s_and_b32 s62, s62, 3")
    A("s_lshl_b32 s62, s62, 3")
    A("s_add_u32 s62, s62, 3")
    A("s_lshr_b32 s64, s64, s62")
    A("s_and_b32 s64, s64, 1")
    A("s_xor_b32 s64, s64, s58")
    A("s_xor_b32 s64, s64, s45")
    A("s_cmp_gt_u32 s60, 128"); A("s_cselect_b32 s60, 1, 0")
    A("s_cmp_gt_u32 s61, 128"); A("s_cselect_b32 s61, 1, 0")
    if force is not None:
        A(f"s_xor_b32 s60, s60, {force[0]}"); A(f"s_xor_b32 s61, s61, {force[1]}")
    A("s_xor_b32 s60, s60, s64")
    A("s_xor_b32 s61, s61, s64")
    A("s_lshl1_add_u32 s60, s61, s60")
    A("v_mov_b32 v19, s60")
    A(f"ds_write_b32 v11, v19 offset:{L_CTL+8}")
    A("s_waitcnt vmcnt(0)")
    A(f"ds_write_b128 v2, v[20:23] offset:{L_Q}")
    A("s_waitcnt lgkmcnt(0)")
    STAMP(4)
    LAB("L_hwait2")
    A("s_barrier")
    A("s_setprio 0")
    srd(36, 12, "0" if nowo else "0x400000")
    A("s_sub_u32 s56, s44, 4")
    A("s_and_b32 s48, s2, 7")
    A("s_lshl_b32 s48, s48, 7")
    A("s_bfe_u32 s49, s2, 0x20003")
    A("s_lshl_b32 s49, s49, 5")
    A("s_add_u32 s59, s48, s49")
    A("s_lshl_b32 s48, s56, 20")
    A("s_add_u32 s48, s48, s59")
    A("v_lshl_add_u32 v8, v6, 10, v7")
    A("s_lshl_b32 s49, s56, 13")
    A(f"s_add_u32 s49, s49, {L_STG}")
    A("v_add_u32 v9, s49, v5")
    for p in range(4):
        for i in range(8):
            A(f"s_add_u32 m0, s49, {i*1024}")
            A(f"s_waitcnt vmcnt({WOF-1})")
            A(f"buffer_load_dwordx4 v8, s[36:39], s48 offen {wopol} lds")
            A("s_add_u32 s48, s48, 32768")
        A("s_waitcnt vmcnt(0)")
        for i in range(8):
            r = 96 + 4 * (8 * p + i)
            A(f"ds_read_b64_tr_b16 v[{r}:{r+1}], v9 offset:{i*1024}")
            A(f"ds_read_b64_tr_b16 v[{r+2}:{r+3}], v9 offset:{i*1024+128}")
        A("s_waitcnt lgkmcnt(0)")
    STAMP(5)
    A("s_lshr_b32 s60, s2, 5")
    A("s_lshl_b32 s61, s60, 3")
    A("s_lshl1_add_u32 s61, s56, s61")
    A("s_lshl_b32 s62, s61, 13")
    A(f"s_add_u32 s62, s62, {OP_OFF}")
    A("s_add_u32 s63, s62, 4096")
    A("s_add_u32 s64, s62, 8192")
    A("s_add_u32 s65, s62, 12288")
    A("s_lshl_b32 s61, s61, 6")
    A(f"s_add_u32 s61, s61, {LSE_OFF}")
    A("v_lshrrev_b32 v8, 5, v0")
    A("v_lshlrev_b32 v8, 4, v8")
    A("s_lshl_b32 s49, s56, 11")
    A(f"s_add_u32 s49, s49, {L_OB}")
    A("v_lshlrev_b32 v9, 3, v0")
    A("v_add_u32 v9, s49, v9")
    A("v_lshlrev_b32 v10, 4, v3")
    A("v_add_u32 v10, s49, v10")
    srd(40, 14, "0x2000")
    A("s_mov_b32 s54, 0")
    A("s_setprio 3")
    A("s_barrier")
    STAMP(6)
    LS, TT = 12, 28
    LAB("L_lpoll")
    for e in range(4):
        A(f"buffer_load_dwordx4 v[{LS+4*e}:{LS+4*e+3}], v8, s[28:31], s61 offen offset:{32*e} sc1")
    A("s_waitcnt vmcnt(0)")
    A(f"v_max3_u32 v92, v{LS}, v{LS+1}, v{LS+2}")
    for i in range(3, 15, 2): A(f"v_max3_u32 v92, v92, v{LS+i}, v{LS+i+1}")
    A(f"v_max_u32 v92, v92, v{LS+15}")
    A("v_cmp_eq_u32 vcc, -1, v92")
    A("s_cbranch_vccz L_lok")
    A("s_add_u32 s54, s54, 1")
    A(f"s_cmp_gt_u32 s54, {spin}")
    A("s_cbranch_scc1 L_lok")
    A("s_sleep 1")
    A("s_branch L_lpoll")
    LAB("L_lok")
    STAMP(7)
    LAB("L_bulk")
    for e in range(4):
        for s in range(4):
            off = (e // 2) * 8192 + s * 2048 + (e % 2) * 1024
            r = TT + 16 * e + 4 * s
            A(f"buffer_load_dwordx4 v[{r}:{r+3}], v2, s[28:31], s{62 + off // 4096} offen offset:{off % 4096} sc1")
    WG = 224
    for e in range(4):
        l = LS + 4 * e
        A(f"v_max3_f32 v92, v{l}, v{l+1}, v{l+2}")
        A(f"v_max_f32 v92, v92, v{l+3}")
        for s in range(4): A(f"v_sub_f32 v{WG+4*e+s}, v{l+s}, v92")
        for s in range(4): A(f"v_exp_f32 v{WG+4*e+s}, v{WG+4*e+s}")
        A("s_nop 0")
        A(f"v_add_f32 v93, v{WG+4*e}, v{WG+4*e+1}")
        A(f"v_add_f32 v94, v{WG+4*e+2}, v{WG+4*e+3}")
        A("v_add_f32 v93, v93, v94")
        A("v_rcp_f32 v93, v93")
        A("s_nop 0")
        for s in range(4): A(f"v_mul_f32 v{WG+4*e+s}, v{WG+4*e+s}, v93")
    for e in range(4):
        A(f"s_waitcnt vmcnt({12 - 4*e})")
        r = TT + 16 * e
        for i in range(4): A(f"v_mul_f32 v{r+i}, v{r+i}, v{WG+4*e}")
        for s in range(1, 4):
            for i in range(4): A(f"v_fmac_f32 v{r+i}, v{r+4*s+i}, v{WG+4*e+s}")
        A(f"v_cvt_pk_bf16_f32 v{r}, v{r}, v{r+1}")
        A(f"v_cvt_pk_bf16_f32 v{r+1}, v{r+2}, v{r+3}")
        A(f"ds_write_b64 v9, v[{r}:{r+1}] offset:{e*512}")
    A("s_waitcnt lgkmcnt(0)")
    for half in range(2):
        for i in range(16):
            A(f"ds_read_b128 v[{TT+4*i}:{TT+4*i+3}], v10 offset:{(16*half+i)*64}")
        for i in range(16):
            A(f"s_waitcnt lgkmcnt({15-i})")
            s = 16 * half + i
            c = "0" if s == 0 else "v[92:95]"
            A(f"v_mfma_f32_16x16x32_bf16 v[92:95], v[{96+4*s}:{99+4*s}], v[{TT+4*i}:{TT+4*i+3}], {c}")
    A("s_nop 7")
    A("v_cmp_u_f32 vcc, v92, v93")
    A("s_cbranch_vccz L_bok")
    A("s_add_u32 s54, s54, 1")
    A(f"s_cmp_gt_u32 s54, {spin}")
    A("s_cbranch_scc0 L_lpoll")
    LAB("L_bok")
    STAMP(8)
    if stamps: A("s_mov_b32 s83, s54")
    A("s_lshl_b32 s49, s56, 6")
    A("v_add_u32 v11, s49, v0")
    A("s_mov_b32 exec_lo, 0x00010001"); A("s_mov_b32 exec_hi, 0x00010001")
    A(f"ds_write_b128 v11, v[92:95] offset:{L_FIN}")
    A("s_waitcnt lgkmcnt(0)")
    A("s_barrier")
    A("s_cmp_eq_u32 s44, 4")
    A("s_cbranch_scc0 L_hdone")
    for w in range(4):
        A(f"ds_read_b128 v[{12+4*w}:{15+4*w}], v0 offset:{L_FIN + 64*w}")
    A("v_lshrrev_b32 v11, 1, v0")
    A("s_lshl_b32 s60, s60, 10")
    A("s_add_u32 s60, s60, s59")
    A("s_waitcnt lgkmcnt(0)")
    for i in range(4):
        A(f"v_add_f32 v{12+i}, v{12+i}, v{16+i}")
        A(f"v_add_f32 v{20+i}, v{20+i}, v{24+i}")
    for i in range(4): A(f"v_add_f32 v{12+i}, v{12+i}, v{20+i}")
    A("v_cvt_pk_bf16_f32 v12, v12, v13")
    A("v_cvt_pk_bf16_f32 v13, v14, v15")
    A("buffer_store_dwordx2 v[12:13], v11, s[40:43], s60 offen")
    LAB("L_hdone")
    A("s_mov_b64 exec, -1")
    LAB("L_fin")
    if stamps:
        A("s_waitcnt vmcnt(0)")
        STAMP(9)
        A("s_lshl_b32 s48, s2, 3")
        A("s_add_u32 s48, s48, s44")
        A("s_lshl_b32 s48, s48, 6")
        A(f"s_add_u32 s48, s48, {ST_OFF}")
        A("v_mov_b32 v1, 0")
        A("s_mov_b64 exec, 1")
        for q in range(4):
            for i in range(4): A(f"v_mov_b32 v{12+i}, s{70+4*q+i}")
            A(f"buffer_store_dwordx4 v[12:15], v1, s[28:31], s48 offen offset:{16*q}")
            A("s_nop 1")
    LAB("L_end")
    A("s_endpgm")
    L.append('.section .rodata,"a"\n.p2align 6')
    L.append(f".amdhsa_kernel {KN}")
    L.append("  .amdhsa_next_free_vgpr 240\n  .amdhsa_next_free_sgpr 96\n  .amdhsa_accum_offset 240")
    L.append("  .amdhsa_group_segment_fixed_size 0\n  .amdhsa_kernarg_size 64")
    L.append("  .amdhsa_user_sgpr_count 2\n  .amdhsa_user_sgpr_kernarg_segment_ptr 1\n  .amdhsa_system_sgpr_workgroup_id_x 1")
    L.append(".end_amdhsa_kernel")
    open(name, "w").write("\n".join(L) + "\n")

if __name__ == "__main__":
    gen("k1.s")
    gen("k1_st.s", stamps=True, nowo=True)
    gen("k1_noclr_st.s", stamps=True, nowo=True, noclear=True)
    gen("k1_wqnt_st.s", stamps=True, nowo=True, wqpol="nt", xpol="nt")
    gen("k1_sl16_st.s", stamps=True, nowo=True, psleep=16)
    gen("k1_all_st.s", stamps=True, nowo=True, noclear=True, wqpol="nt", xpol="nt", psleep=16)
    gen("k1_nopoll_st.s", stamps=True, nowo=True, nopoll=True)
```

```python
import sys, struct, math
KN = "standalone__gqa_block_cached__sampling_kernel"
HDR = open("standalone__gqa_block_cached__sampling.s.ref").read().split("; Override launch")[0]

CNT_OFF, QG_OFF, LSE_OFF, OG_OFF, Y_OFF, ST_OFF = 0x1000, 0x10000, 0x30000, 0x80000, 0x100000, 0x800000
L_Q, L_CTL, L_OC, L_STG = 0x0, 0x400, 0x800, 0x3000
LDS_BYTES = 0xB000
def f32(x): return struct.unpack("<I", struct.pack("<f", x))[0]
CSCALE = f32((128 ** -0.5) * math.log2(math.e))
FULL = "row_mask:0xf bank_mask:0xf"

def gen(name, stamps=False, spin=20000, F0=8, NI0=6, S=24, hold=True, qsleep=1, h1sleep=1, h2sleep=1, wpol="nt",
        TH=4, notail=False, pre=0, ramp=False, noq=False, nowq=False):
    L = []
    def A(s): L.append("  " + s)
    def LAB(s): L.append(s + ":")
    def STAMP(i):
        if stamps:
            A("s_memrealtime s[66:67]"); A("s_waitcnt lgkmcnt(0)"); A(f"s_mov_b32 s{70+i}, s66")
    def srd(d, lo, size):
        A(f"s_mov_b32 s{d}, s{lo}"); A(f"s_mov_b32 s{d+1}, s{lo+1}")
        A(f"s_mov_b32 s{d+2}, {size}"); A(f"s_mov_b32 s{d+3}, 0x20000")
    L.append(HDR.rstrip())
    L.append(f"; @launch grid=(256,1,1) block=(512,1,1) lds={LDS_BYTES}")
    L.append('.amdgcn_target "amdgcn-amd-amdhsa--gfx950"\n.text')
    L.append(f".globl {KN}\n.p2align 8\n.type {KN},@function\n{KN}:")
    A("s_cmp_ge_u32 s2, 256")
    A("s_cbranch_scc1 L_end")
    if stamps: A("s_memrealtime s[92:93]")
    A("s_load_dwordx16 s[4:19], s[0:1], 0")
    A("v_lshrrev_b32 v1, 6, v0")
    A("v_and_b32 v0, 63, v0")
    A("v_readfirstlane_b32 s44, v1")
    A("v_mov_b32 v9, 0")
    if hold: A(f"ds_write_b32 v9, v9 offset:{L_CTL}")
    if stamps:
        for i in range(16): A(f"s_mov_b32 s{70+i}, 0")
    A("s_and_b32 s20, s2, 1"); A("s_bfe_u32 s21, s2, 0x10001"); A("s_bfe_u32 s22, s2, 0x10002"); A("s_lshr_b32 s23, s2, 3")
    A("s_lshl1_add_u32 s45, s22, s20")
    A("s_and_b32 s24, s20, s23"); A("s_xor_b32 s21, s21, s24")
    A("s_lshr_b32 s24, s23, 1"); A("s_and_b32 s24, s24, s22"); A("s_xor_b32 s21, s21, s24")
    A("s_lshl1_add_u32 s46, s23, s21")
    A("s_lshl2_add_u32 s47, s46, s45")
    A("v_lshlrev_b32 v2, 4, v0")
    A("v_lshrrev_b32 v3, 4, v0")
    A("v_bfe_u32 v4, v0, 2, 2")
    A("v_and_b32 v5, 3, v0")
    A("s_waitcnt lgkmcnt(0)")
    if stamps: A("s_mov_b32 s85, s92")
    if hold: A("s_barrier")
    A("s_cmp_ge_u32 s44, 4")
    A("s_cbranch_scc1 L_helper")
    RING = 64
    def R(n, lo=0, cnt=4): return f"v[{RING+4*n+lo}:{RING+4*n+lo+cnt-1}]"
    QV, DB, AS, AC1, AC2 = 12, 16, 32, 40, 44
    X, T0, T1, PL, PH, MRUN, LRUN, SC, TK = 48, 49, 50, 51, 52, 54, 55, 56, 57
    A("v_lshlrev_b32 v1, 6, v3")
    A("v_lshl_add_u32 v1, v4, 8, v1")
    A("v_lshl_add_u32 v1, v5, 4, v1")
    A("s_lshl_b32 s56, s46, 21")
    A(f"s_mul_i32 s57, s45, {4*S}")
    A("s_add_u32 s57, s57, s44")
    A("s_lshl_b32 s57, s57, 12")
    A("s_add_u32 s48, s56, s57")
    srd(32, 6, "0x8000000")
    srd(36, 8, "0x8000000")
    def ld(slot, p, soff):
        if p < 4: A(f"buffer_load_dwordx4 {R(slot)}, v1, s[32:35], {soff} offen offset:{p*1024} nt")
        else:     A(f"buffer_load_dwordx4 {R(slot)}, v2, s[36:39], {soff} offen offset:{(p-4)*1024} nt")
    for n in range(8 * NI0):
        if hold and n == pre:
            LAB("L_go0")
            A(f"ds_read_b32 v10, v9 offset:{L_CTL}")
            A("s_waitcnt lgkmcnt(0)")
            A("v_readfirstlane_b32 s58, v10")
            A("s_cmp_eq_u32 s58, 0")
            A("s_cbranch_scc1 L_go0")
        if n >= F0: A(f"s_waitcnt vmcnt({F0-1})")
        if ramp and n in (0, 8, 16, 24, 32): STAMP({0: 3, 8: 5, 16: 6, 24: 7, 32: 8}[n])
        ld(n, n % 8, "s48")
        if n % 8 == 7: A("s_add_u32 s48, s48, 16384")
        if n == F0 - 1:
            srd(28, 18, "0x20000000")
            A(f"s_mov_b32 s59, {CSCALE}")
            A(f"v_mov_b32 v{MRUN}, 0xff7fffff")
            A(f"v_mov_b32 v{LRUN}, 0")
            for i in range(8): A(f"v_mov_b32 v{AC1+i}, 0")
            for i in range(8): A(f"v_mov_b32 v{AS+i}, 0")
            A("s_lshl_b32 s52, s46, 8")
            A(f"s_add_u32 s52, s52, {CNT_OFF}")
            A(f"s_mov_b32 s60, {NI0}")
    STAMP(0)
    A("s_barrier")
    A(f"ds_read_b128 v[{QV}:{QV+3}], v2 offset:{L_Q}")
    A(f"ds_read_b64 v[10:11], v9 offset:{L_CTL+8}")
    A("s_waitcnt lgkmcnt(0)")
    A("v_readfirstlane_b32 s53, v10")
    A("v_readfirstlane_b32 s89, v11")
    STAMP(1)
    uid = [0]
    def item(base, waits, loads):
        u = uid[0]; uid[0] += 1
        def dpp3(t):
            d = DB + 4 * t
            var = f"row_mask:0xf bank_mask:{1<<t:#x}"
            A(f"v_add_f32_dpp v{X}, v{d+(t+1)%4}, v{d+t} row_ror:12 {var}")
            A(f"v_add_f32_dpp v{X}, v{d+(t+2)%4}, v{X} row_ror:8 {var}")
            A(f"v_add_f32_dpp v{X}, v{d+(t+3)%4}, v{X} row_ror:4 {var}")
        for p in range(4):
            w = waits(p)
            if w is not None: A(f"s_waitcnt vmcnt({w})")
            d = DB + 4 * p
            A(f"v_mfma_f32_16x16x32_bf16 v[{d}:{d+3}], {R(base+p)}, v[{QV}:{QV+3}], 0")
            loads(p)
        A("s_nop 4")
        dpp3(0); dpp3(1); dpp3(2); dpp3(3)
        A("s_nop 1")
        A(f"v_max_f32_dpp v{T0}, v{X}, v{X} row_ror:4 {FULL}")
        A("s_nop 1")
        A(f"v_max_f32_dpp v{T0}, v{T0}, v{T0} row_ror:8 {FULL}")
        A(f"v_mov_b32 v{T1}, v{T0}"); A("s_nop 1")
        A(f"v_permlane16_swap_b32 v{T0}, v{T1}"); A(f"v_max_f32 v{T0}, v{T0}, v{T1}")
        A(f"v_mov_b32 v{T1}, v{T0}"); A("s_nop 1")
        A(f"v_permlane32_swap_b32 v{T0}, v{T1}"); A(f"v_max_f32 v{T0}, v{T0}, v{T1}")
        A(f"v_mul_f32 v{T0}, s59, v{T0}")
        A(f"v_cmp_gt_f32 vcc, v{T0}, v{MRUN}")
        A(f"s_cbranch_vccz L_nors{u}")
        A(f"v_max_f32 v{T0}, v{T0}, v{MRUN}")
        A(f"v_sub_f32 v{SC}, v{MRUN}, v{T0}")
        A(f"v_exp_f32 v{SC}, v{SC}")
        A(f"v_mov_b32 v{MRUN}, v{T0}")
        A(f"v_mul_f32 v{LRUN}, v{LRUN}, v{SC}")
        for i in range(8): A(f"v_mul_f32 v{AC1+i}, v{AC1+i}, v{SC}")
        LAB(f"L_nors{u}")
        A(f"v_fma_f32 v{X}, v{X}, s59, -v{MRUN}")
        A(f"v_exp_f32 v{X}, v{X}")
        A("s_nop 0")
        A(f"v_cvt_pk_bf16_f32 v{PL}, v{X}, 0")
        A(f"v_cvt_pk_bf16_f32 v{PH}, 0, v{X}")
        A(f"v_add_f32 v{LRUN}, v{LRUN}, v{X}")
        def ab(t):
            a = AS + 2 * t
            for jb in range(4):
                src = PL if jb % 2 == 0 else PH
                rot = (4 * (jb - t)) % 16
                ctl = f"row_ror:{rot}" if rot else "quad_perm:[0,1,2,3]"
                A(f"v_mov_b32_dpp v{a + jb//2}, v{src} {ctl} row_mask:0xf bank_mask:{1<<jb:#x}")
        ab(0); ab(1)
        for t in range(4):
            p = 4 + t
            w = waits(p)
            if w is not None: A(f"s_waitcnt vmcnt({w})")
            a = AS + 2 * t
            A(f"v_mfma_f32_16x16x16_bf16 v[{AC1}:{AC1+3}], {R(base+p,0,2)}, v[{a}:{a+1}], v[{AC1}:{AC1+3}]")
            A(f"v_mfma_f32_16x16x16_bf16 v[{AC2}:{AC2+3}], {R(base+p,2,2)}, v[{a}:{a+1}], v[{AC2}:{AC2+3}]")
            loads(p)
            if t + 2 < 4: ab(t + 2)
    def ld0(p):
        A("s_waitcnt vmcnt(7)")
        ld(p, p, "s48")
    item(0, lambda p: None, ld0)
    A("s_waitcnt vmcnt(8)")
    for i in range(1, NI0):
        item(8 * i, lambda p: None, lambda p: None)
    STAMP(2)
    LAB("L_loop")
    A("s_add_u32 s60, s60, 1")
    A(f"s_cmp_lt_u32 s60, {S}")
    A("s_cbranch_scc0 L_dyn")
    A("s_add_u32 s48, s48, 16384")
    A(f"s_cmp_lt_u32 s60, {S-1}")
    A("s_cbranch_scc1 L_body")
    A("s_branch L_claim")
    LAB("L_dyn")
    A("s_waitcnt vmcnt(8)")
    A(f"v_readfirstlane_b32 s61, v{TK}")
    A("s_sub_u32 s61, s61, s53")
    A(f"s_cmp_lt_u32 s61, {512 - 16*S}")
    A("s_cbranch_scc0 L_last")
    A(f"s_add_u32 s61, s61, {16*S}")
    A("s_lshl_b32 s61, s61, 12")
    A("s_add_u32 s48, s56, s61")
    LAB("L_claim")
    A(f"v_mov_b32 v{TK}, 1")
    A("s_mov_b64 exec, 1")
    A(f"buffer_atomic_add v{TK}, v9, s[28:31], s52 offen sc0 sc1")
    A("s_mov_b64 exec, -1")
    LAB("L_body")
    item(0, lambda p: 7, lambda p: ld(p, p, "s48"))
    A("s_branch L_loop")
    LAB("L_last")
    item(0, lambda p: 7 - p, lambda p: None)
    STAMP(4)
    if stamps: A("s_mov_b32 s80, s60")
    A(f"v_add_f32_dpp v{LRUN}, v{LRUN}, v{LRUN} row_ror:4 {FULL}")
    A(f"s_mul_i32 s58, s44, 2560")
    A("v_lshlrev_b32 v8, 3, v0")
    A(f"v_add_f32_dpp v{LRUN}, v{LRUN}, v{LRUN} row_ror:8 {FULL}")
    A(f"v_mov_b32 v{T1}, v{LRUN}")
    A("v_add_u32 v10, s58, v2")
    A("v_add_u32 v11, s58, v8")
    A(f"v_permlane16_swap_b32 v{LRUN}, v{T1}"); A(f"v_add_f32 v{LRUN}, v{LRUN}, v{T1}")
    A(f"v_mov_b32 v{T1}, v{LRUN}")
    A(f"ds_write_b128 v10, v[{AC1}:{AC1+3}] offset:{L_OC}")
    A(f"ds_write_b128 v10, v[{AC2}:{AC2+3}] offset:{L_OC+1024}")
    A(f"v_permlane32_swap_b32 v{LRUN}, v{T1}"); A(f"v_add_f32 v{LRUN}, v{LRUN}, v{T1}")
    A(f"ds_write_b64 v11, v[{MRUN}:{LRUN}] offset:{L_OC+2048}")
    A("s_waitcnt lgkmcnt(0)")
    A("s_barrier")
    if notail: A("s_branch L_fin")
    A("s_cmp_eq_u32 s44, 1")
    A("s_cbranch_scc1 L_hop2")
    A("s_cmp_eq_u32 s44, 0")
    A("s_cbranch_scc0 L_fin")
    for w in range(4):
        A(f"ds_read_b64 v[{16+2*w}:{17+2*w}], v8 offset:{L_OC+w*2560+2048}")
    for w in range(4):
        A(f"ds_read_b128 v[{64+8*w}:{67+8*w}], v2 offset:{L_OC+w*2560}")
        A(f"ds_read_b128 v[{68+8*w}:{71+8*w}], v2 offset:{L_OC+w*2560+1024}")
    A("s_lshl_b32 s86, s47, 11")
    A(f"s_add_u32 s86, s86, {OG_OFF}")
    A("s_lshl_b32 s87, s47, 5")
    A(f"s_add_u32 s87, s87, {LSE_OFF}")
    A("v_lshlrev_b32 v10, 9, v5")
    A("v_lshl_add_u32 v10, v3, 7, v10")
    A("v_lshl_add_u32 v10, v4, 4, v10")
    A("s_waitcnt lgkmcnt(8)")
    A("v_max3_f32 v24, v16, v18, v20")
    A("v_max_f32 v24, v24, v22")
    for w in range(4): A(f"v_sub_f32 v{16+2*w}, v{16+2*w}, v24")
    for w in range(4): A(f"v_exp_f32 v{16+2*w}, v{16+2*w}")
    A("s_nop 0")
    A("v_mul_f32 v25, v16, v17")
    for w in range(1, 4): A(f"v_fmac_f32 v25, v{16+2*w}, v{17+2*w}")
    A("v_rcp_f32 v26, v25")
    A("v_log_f32 v28, v25")
    A("s_nop 0")
    for w in range(4): A(f"v_mul_f32 v{16+2*w}, v{16+2*w}, v26")
    A("v_add_f32 v28, v28, v24")
    A("v_xor_b32 v29, s89, v28")
    A("s_waitcnt lgkmcnt(0)")
    for i in range(8): A(f"v_mul_f32 v{64+i}, v{64+i}, v16")
    for w in range(1, 4):
        for i in range(8): A(f"v_fmac_f32 v{64+i}, v{64+8*w+i}, v{16+2*w}")
    A("v_cvt_pk_bf16_f32 v40, v64, v68")
    A("v_cvt_pk_bf16_f32 v41, v65, v69")
    A("v_cvt_pk_bf16_f32 v44, v66, v70")
    A("v_cvt_pk_bf16_f32 v45, v67, v71")
    A("v_xor_b32 v42, s89, v40"); A("v_xor_b32 v43, s89, v41")
    A("v_xor_b32 v46, s89, v44"); A("v_xor_b32 v47, s89, v45")
    A("buffer_store_dwordx4 v[40:43], v10, s[28:31], s86 offen sc1")
    A("buffer_store_dwordx4 v[44:47], v10, s[28:31], s86 offen offset:64 sc1")
    A("s_mov_b64 exec, 15")
    A("buffer_store_dwordx2 v[28:29], v8, s[28:31], s87 offen sc1")
    A("s_mov_b64 exec, -1")
    A("s_barrier")
    STAMP(5)
    A("s_branch L_fin")
    LAB("L_hop2")
    srd(40, 14, "0x2000")
    A("s_lshl_b32 s86, s2, 12")
    A(f"s_add_u32 s86, s86, {Y_OFF}")
    A("s_lshl_b32 s87, s2, 5")
    A("v_lshlrev_b32 v10, 2, v0")
    A("s_mov_b32 s88, 0")
    A("s_barrier")
    A("s_barrier")
    LAB("L_h2poll")
    for i in range(4):
        A(f"buffer_load_dwordx4 v[{16+4*i}:{19+4*i}], v2, s[28:31], s86 offen offset:{1024*i} sc1")
    for i in range(4):
        A(f"s_waitcnt vmcnt({3-i})")
        r = 16 + 4 * i
        A(f"v_bitop3_b32 v{32+2*i}, v{r}, v{r+2}, s89 bitop3:0x96")
        A(f"v_bitop3_b32 v{33+2*i}, v{r+1}, v{r+3}, s89 bitop3:0x96")
    A("v_or3_b32 v32, v32, v33, v34")
    A("v_or3_b32 v35, v35, v36, v37")
    A("v_or3_b32 v32, v32, v38, v39")
    A("v_or_b32 v32, v32, v35")
    A("v_cmp_ne_u32 vcc, 0, v32")
    A("s_and_b64 exec, exec, vcc")
    A("s_cbranch_execz L_h2ok")
    A("s_add_u32 s88, s88, 1")
    A(f"s_cmp_gt_u32 s88, {spin}")
    A("s_cbranch_scc1 L_h2ok")
    if h2sleep: A(f"s_sleep {h2sleep}")
    A("s_branch L_h2poll")
    LAB("L_h2ok")
    A("s_mov_b64 exec, -1")
    STAMP(6)
    if stamps: A("s_mov_b32 s83, s88")
    A("v_add_f32 v16, v16, v20"); A("v_add_f32 v17, v17, v21")
    A("v_add_f32 v24, v24, v28"); A("v_add_f32 v25, v25, v29")
    A("v_add_f32 v16, v16, v24"); A("v_add_f32 v17, v17, v25")
    A("s_nop 0")
    A(f"v_add_f32_dpp v16, v16, v16 row_ror:8 {FULL}")
    A(f"v_add_f32_dpp v17, v17, v17 row_ror:8 {FULL}")
    A("v_mov_b32 v18, v16"); A("v_mov_b32 v19, v17"); A("s_nop 0")
    A("v_permlane16_swap_b32 v16, v18"); A("v_permlane16_swap_b32 v17, v19")
    A("v_add_f32 v16, v16, v18"); A("v_add_f32 v17, v17, v19")
    A("v_mov_b32 v18, v16"); A("v_mov_b32 v19, v17"); A("s_nop 0")
    A("v_permlane32_swap_b32 v16, v18"); A("v_permlane32_swap_b32 v17, v19")
    A("v_add_f32 v16, v16, v18"); A("v_add_f32 v17, v17, v19")
    A("v_cvt_pk_bf16_f32 v16, v16, v17")
    A("s_mov_b64 exec, 0xff")
    A("buffer_store_dword v16, v10, s[40:43], s87 offen")
    A("s_cmp_eq_u32 s2, 0")
    A("s_cbranch_scc0 L_h2done")
    A("s_mov_b64 exec, 1")
    A("v_mov_b32 v17, s89")
    A("buffer_store_dword v17, v10, s[28:31], 0 offen sc1")
    LAB("L_h2done")
    A("s_mov_b64 exec, -1")
    A("s_branch L_fin")

    LAB("L_helper")
    A("s_setprio 3")
    if not noq:
        A("s_cmp_eq_u32 s44, 4"); A("s_cbranch_scc1 L_h0")
    srd(28, 18, "0x20000000")
    A("s_branch L_hwaitB")
    LAB("L_h0")
    A("s_lshl_b32 s52, s46, 8")
    A(f"s_add_u32 s52, s52, {CNT_OFF}")
    A("s_load_dword s89, s[18:19], 0")
    A("s_load_dword s88, s[18:19], s52")
    srd(36, 10, "0" if nowq else "0x400000")
    A("s_and_b32 s40, s46, 7")
    A("s_lshr_b32 s41, s46, 3")
    A("s_lshl3_add_u32 s48, s45, s41")
    A("s_lshl_b32 s49, s40, 5")
    A("s_add_u32 s48, s48, s49")
    A("s_lshl_b32 s49, s48, 5")
    A("v_lshrrev_b32 v6, 1, v0")
    A("v_and_b32 v7, 1, v0")
    A("v_lshlrev_b32 v7, 4, v7")
    A("v_lshl_add_u32 v8, v6, 13, v7")
    for i in range(16):
        A(f"s_mov_b32 m0, {L_STG + i*1024}")
        if i: A(f"s_add_u32 s49, s49, {32*8192}")
        else: A("s_nop 0")
        A(f"buffer_load_dwordx4 v8, s[36:39], s49 offen {wpol} lds")
    srd(32, 4, "0x2000")
    A("v_and_b32 v6, 7, v0")
    A("v_lshlrev_b32 v7, 10, v6")
    A("v_lshl_add_u32 v7, v3, 4, v7")
    A("s_mov_b32 exec_lo, 0x00ff00ff"); A("s_mov_b32 exec_hi, 0x00ff00ff")
    for s in range(16):
        A(f"buffer_load_dwordx4 v[{96+4*s}:{99+4*s}], v7, s[32:35], 0 offen offset:{64*s}")
    A("s_mov_b64 exec, -1")
    if hold:
        A("v_mov_b32 v10, 1")
        A(f"ds_write_b32 v9, v10 offset:{L_CTL}")
    STAMP(3)
    srd(28, 18, "0x20000000")
    A("v_and_b32 v11, 15, v0")
    A("v_lshlrev_b32 v12, 8, v3")
    A("v_lshl_add_u32 v12, v11, 3, v12")
    A("v_lshlrev_b32 v13, 14, v6")
    A("v_lshl_add_u32 v13, v3, 4, v13")
    A("s_lshl_b32 s48, s48, 6")
    A(f"s_add_u32 s48, s48, {QG_OFF}")
    A("v_lshlrev_b32 v14, 9, v5")
    A("v_lshl_add_u32 v14, v3, 7, v14")
    A("v_lshl_add_u32 v14, v4, 5, v14")
    A("s_lshl_b32 s52, s46, 11")
    A(f"s_add_u32 s52, s52, {QG_OFF}")
    A("s_waitcnt vmcnt(0) lgkmcnt(0)")
    A("s_add_u32 s89, s89, 0x9e3779b1")
    A("s_or_b32 s89, s89, 1")
    STAMP(0)
    for s in range(16):
        A(f"ds_read_b64_tr_b16 v[{160+4*s}:{161+4*s}], v12 offset:{L_STG + s*1024}")
        A(f"ds_read_b64_tr_b16 v[{162+4*s}:{163+4*s}], v12 offset:{L_STG + s*1024 + 128}")
    for s in range(16):
        rem = 2 * (15 - s)
        A(f"s_waitcnt lgkmcnt({min(rem, 15)})")
        c = "0" if s == 0 else "v[16:19]"
        A(f"v_mfma_f32_16x16x32_bf16 v[16:19], v[{160+4*s}:{163+4*s}], v[{96+4*s}:{99+4*s}], {c}")
    A("v_mov_b32 v10, s88")
    A("v_mov_b32 v11, s89")
    A(f"ds_write_b64 v9, v[10:11] offset:{L_CTL+8}")
    A("s_nop 4")
    A("v_cvt_pk_bf16_f32 v20, v16, v17")
    A("v_cvt_pk_bf16_f32 v21, v18, v19")
    A("v_xor_b32 v22, s89, v20")
    A("v_xor_b32 v23, s89, v21")
    A("s_mov_b32 exec_lo, 0x00ff00ff"); A("s_mov_b32 exec_hi, 0x00ff00ff")
    A("buffer_store_dwordx4 v[20:23], v13, s[28:31], s48 offen sc1")
    A("s_mov_b64 exec, -1")
    STAMP(1)
    A("s_mov_b32 s54, 0")
    LAB("L_qpoll")
    A("buffer_load_dwordx4 v[24:27], v14, s[28:31], s52 offen sc1")
    A("buffer_load_dwordx4 v[28:31], v14, s[28:31], s52 offen offset:16 sc1")
    A("s_waitcnt vmcnt(0)")
    A("v_bitop3_b32 v32, v24, v26, s89 bitop3:0x96")
    A("v_bitop3_b32 v33, v25, v27, s89 bitop3:0x96")
    A("v_bitop3_b32 v34, v28, v30, s89 bitop3:0x96")
    A("v_bitop3_b32 v35, v29, v31, s89 bitop3:0x96")
    A("v_or3_b32 v36, v32, v33, v34")
    A("v_or_b32 v36, v36, v35")
    A("v_cmp_ne_u32 vcc, 0, v36")
    A("s_and_b64 exec, exec, vcc")
    A("s_cbranch_execz L_qok")
    A("s_add_u32 s54, s54, 1")
    A(f"s_cmp_gt_u32 s54, {spin}")
    A("s_cbranch_scc1 L_qok")
    if qsleep: A(f"s_sleep {qsleep}")
    A("s_branch L_qpoll")
    LAB("L_qok")
    A("s_mov_b64 exec, -1")
    A(f"ds_write_b64 v2, v[24:25] offset:{L_Q}")
    A(f"ds_write_b64 v2, v[28:29] offset:{L_Q+8}")
    if stamps: A("s_mov_b32 s82, s54")
    A("s_waitcnt lgkmcnt(0)")
    STAMP(2)
    LAB("L_hwaitB")
    A("s_barrier")
    A("s_setprio 0")
    A(f"ds_read_b32 v10, v9 offset:{L_CTL+12}")
    srd(36, 12, "0x400000")
    A("s_sub_u32 s56, s44, 4")
    A("s_lshr_b32 s57, s56, 1")
    A("s_and_b32 s58, s56, 1")
    A("s_lshr_b32 s59, s2, 3")
    A("s_and_b32 s60, s2, 7")
    A("s_lshl_b32 s48, s59, 17")
    A("s_lshl1_add_u32 s49, s60, s58")
    A("s_lshl_b32 s50, s49, 6")
    A("s_add_u32 s48, s48, s50")
    A("v_lshrrev_b32 v6, 2, v0")
    A("v_lshlrev_b32 v7, 10, v6")
    A("v_lshl_add_u32 v7, v5, 4, v7")
    A("s_lshl_b32 s50, s56, 13")
    A(f"s_add_u32 s50, s50, {L_STG}")
    for i in range(8):
        A(f"s_add_u32 m0, s50, {i*1024}")
        A("s_waitcnt vmcnt(1)")
        A(f"buffer_load_dwordx4 v7, s[36:39], s48 offen {wpol} lds")
        A("s_add_u32 s48, s48, 16384")
    A("v_lshl_add_u32 v8, v4, 2, v3")
    A("v_lshlrev_b32 v8, 6, v8")
    A("v_lshl_add_u32 v8, v5, 3, v8")
    A("v_add_u32 v8, s50, v8")
    A("s_waitcnt lgkmcnt(0)")
    A("v_readfirstlane_b32 s89, v10")
    A("v_lshl_add_u32 v11, v5, 5, v4")
    A("v_lshlrev_b32 v12, 11, v11")
    A("v_lshl_add_u32 v12, v3, 4, v12")
    A("v_lshlrev_b32 v13, 5, v11")
    A("s_lshl_b32 s51, s57, 7")
    A("s_andn2_b32 s52, s59, 3")
    A("s_add_u32 s51, s51, s52")
    A("s_and_b32 s52, s59, 3")
    A("s_lshl_b32 s53, s51, 11")
    A("s_lshl_b32 s54, s52, 9")
    A("s_add_u32 s53, s53, s54")
    A(f"s_add_u32 s53, s53, {OG_OFF}")
    A("s_lshl_b32 s54, s51, 5")
    A("s_lshl3_add_u32 s54, s52, s54")
    A(f"s_add_u32 s54, s54, {LSE_OFF}")
    A("v_lshrrev_b32 v14, 1, v4")
    A("v_lshl_add_u32 v14, v5, 5, v14")
    A("v_lshlrev_b32 v14, 12, v14")
    A("v_lshl_add_u32 v14, v3, 5, v14")
    A("v_and_b32 v15, 1, v4")
    A("v_lshl_add_u32 v14, v15, 4, v14")
    A("s_lshl_b32 s55, s57, 7")
    A("s_lshl1_add_u32 s55, s49, s55")
    A("s_lshl_b32 s55, s55, 5")
    A("s_add_u32 s55, s55, s59")
    A("s_lshl_b32 s55, s55, 7")
    A(f"s_add_u32 s55, s55, {Y_OFF}")
    A("s_waitcnt vmcnt(0)")
    for ct in range(2):
        for f in range(4):
            r = 96 + 16 * ct + 4 * f
            A(f"ds_read_b64_tr_b16 v[{r}:{r+1}], v8 offset:{f*2048 + ct*32}")
            A(f"ds_read_b64_tr_b16 v[{r+2}:{r+3}], v8 offset:{f*2048 + 1024 + ct*32}")
    A("s_waitcnt lgkmcnt(0)")
    STAMP(5)
    A("s_mov_b32 s61, 0")
    A("s_barrier")
    if notail: A("s_branch L_fin")
    A("s_barrier")
    STAMP(6)
    A("s_mov_b64 exec, 0xffff")
    LAB("L_h1a")
    A("buffer_load_dwordx2 v[64:65], v13, s[28:31], s54 offen sc1")
    A("s_waitcnt vmcnt(0)")
    A("v_xor_b32 v66, v64, v65")
    A("v_cmp_ne_u32 vcc, s89, v66")
    A("s_and_b64 exec, exec, vcc")
    A("s_bcnt1_i32_b64 s62, exec")
    A(f"s_cmp_le_u32 s62, {TH}")
    A("s_cbranch_scc1 L_h1b")
    A("s_add_u32 s61, s61, 1")
    A(f"s_cmp_gt_u32 s61, {spin}")
    A("s_cbranch_scc1 L_h1b")
    if h1sleep: A(f"s_sleep {h1sleep}")
    A("s_branch L_h1a")
    LAB("L_h1b")
    A("s_mov_b64 exec, -1")
    LAB("L_h1poll")
    A("buffer_load_dwordx2 v[64:65], v13, s[28:31], s54 offen sc1")
    for j in range(8):
        A(f"buffer_load_dwordx4 v[{32+4*j}:{35+4*j}], v12, s[28:31], s53 offen offset:{64*j} sc1")
    A("s_waitcnt vmcnt(8)")
    A("v_bitop3_b32 v66, v64, v65, s89 bitop3:0x96")
    for j in range(8):
        r = 32 + 4 * j
        A(f"s_waitcnt vmcnt({7-j})")
        A(f"v_bitop3_b32 v67, v{r}, v{r+2}, s89 bitop3:0x96")
        A(f"v_bitop3_b32 v68, v{r+1}, v{r+3}, s89 bitop3:0x96")
        A("v_or3_b32 v66, v66, v67, v68")
    A("v_cmp_ne_u32 vcc, 0, v66")
    A("s_and_b64 exec, exec, vcc")
    A("s_cbranch_execz L_h1ok")
    A("s_add_u32 s61, s61, 1")
    A(f"s_cmp_gt_u32 s61, {spin}")
    A("s_cbranch_scc1 L_h1ok")
    A("s_branch L_h1poll")
    LAB("L_h1ok")
    A("s_mov_b64 exec, -1")
    STAMP(7)
    if stamps: A("s_mov_b32 s83, s61")
    for f in range(4):
        r = 32 + 8 * f
        A(f"v_mov_b32 v{r+2}, v{r+4}"); A(f"v_mov_b32 v{r+3}, v{r+5}")
    A(f"v_max_f32_dpp v66, v64, v64 row_ror:8 {FULL}")
    for f in range(4):
        r = 32 + 8 * f
        for ct in range(2):
            acc = 68 + 4 * ct
            c = "0" if f == 0 else f"v[{acc}:{acc+3}]"
            w = 96 + 16 * ct + 4 * f
            A(f"v_mfma_f32_16x16x32_bf16 v[{acc}:{acc+3}], v[{w}:{w+3}], v[{r}:{r+3}], {c}")
        if f == 0:
            A(f"v_max_f32_dpp v66, v66, v66 row_ror:4 {FULL}")
            A("v_sub_f32 v66, v64, v66")
            A("v_exp_f32 v66, v66")
        if f == 1:
            A(f"v_add_f32_dpp v67, v66, v66 row_ror:8 {FULL}")
        if f == 2:
            A(f"v_add_f32_dpp v67, v67, v67 row_ror:4 {FULL}")
            A("v_rcp_f32 v67, v67")
    A("v_mul_f32 v66, v66, v67")
    A("s_nop 6")
    for i in range(8): A(f"v_mul_f32 v{68+i}, v{68+i}, v66")
    for j in range(4):
        A(f"v_add_f32_dpp v{76+j}, v{68+j}, v{68+j} row_ror:8 row_mask:0xf bank_mask:0x3")
    for j in range(4):
        A(f"v_add_f32_dpp v{76+j}, v{72+j}, v{72+j} row_ror:8 row_mask:0xf bank_mask:0xc")
    for j in range(2):
        A(f"v_add_f32_dpp v{80+j}, v{76+j}, v{76+j} row_ror:12 row_mask:0xf bank_mask:0x5")
    for j in range(2):
        A(f"v_add_f32_dpp v{80+j}, v{78+j}, v{78+j} row_ror:4 row_mask:0xf bank_mask:0xa")
    A("v_xor_b32 v82, s89, v80"); A("v_xor_b32 v83, s89, v81")
    A("buffer_store_dwordx4 v[80:83], v14, s[28:31], s55 offen sc1")
    A("s_barrier")
    STAMP(8)
    LAB("L_fin")
    if stamps:
        A("s_waitcnt vmcnt(0)")
        STAMP(9)
        A("s_lshl_b32 s48, s2, 3")
        A("s_add_u32 s48, s48, s44")
        A("s_lshl_b32 s48, s48, 6")
        A(f"s_add_u32 s48, s48, {ST_OFF}")
        A("v_mov_b32 v1, 0")
        A("s_mov_b64 exec, 1")
        for q in range(4):
            for i in range(4): A(f"v_mov_b32 v{12+i}, s{70+4*q+i}")
            A(f"buffer_store_dwordx4 v[12:15], v1, s[28:31], s48 offen offset:{16*q}")
            A("s_nop 1")
    LAB("L_end")
    A("s_endpgm")
    nv = max(224, RING + 32 * NI0)
    L.append('.section .rodata,"a"\n.p2align 6')
    L.append(f".amdhsa_kernel {KN}")
    L.append(f"  .amdhsa_next_free_vgpr {nv}\n  .amdhsa_next_free_sgpr 96\n  .amdhsa_accum_offset {nv}")
    L.append("  .amdhsa_group_segment_fixed_size 0\n  .amdhsa_kernarg_size 64")
    L.append("  .amdhsa_user_sgpr_count 2\n  .amdhsa_user_sgpr_kernarg_segment_ptr 1\n  .amdhsa_system_sgpr_workgroup_id_x 1")
    L.append(".end_amdhsa_kernel")
    open(name, "w").write("\n".join(L) + "\n")

if __name__ == "__main__":
    gen("k3.s")
    gen("k3_a_st.s", stamps=True, hold=False, ramp=True, notail=True)
    gen("k3_b_st.s", stamps=True, hold=False, ramp=True, notail=True, noq=True, S=30)
    gen("k3_c_st.s", stamps=True, hold=False, ramp=True, notail=True, nowq=True)
    gen("k3_d_st.s", stamps=True, hold=False, ramp=True, notail=True, F0=16)
    gen("k3_e_st.s", stamps=True, hold=False, ramp=True, notail=True, noq=True, S=30, F0=16)
```

```python
import sys, struct, math
KN = "standalone__gqa_block_cached__sampling_kernel"
HDR = open("standalone__gqa_block_cached__sampling.s.ref").read().split("; Override launch")[0]

CNT_OFF, QG_OFF, OG_OFF, Y_OFF, ST_OFF = 0x1000, 0x10000, 0x40000, 0x140000, 0x800000
L_Q, L_CTL, L_OC, L_STG = 0x0, 0x800, 0xC00, 0x3400
L_OI = L_STG + 0x5000
L_BUF = L_STG + 0x10000
def f32(x): return struct.unpack("<I", struct.pack("<f", x))[0]
FULL = "row_mask:0xf bank_mask:0xf"

def gen(name, stamps=False, spin=20000, F0=7, NI0=6, S=26, NP=7, NL=2, padto=0, trace=False, outpol=""):
    L = []
    def A(s): L.append("  " + s)
    def C(s): L.append("  ; " + s)
    def LAB(s): L.append(s + ":")
    def STAMP(i):
        if stamps:
            A("s_memrealtime s[66:67]"); A("s_waitcnt lgkmcnt(0)"); A(f"s_mov_b32 s{70+i}, s66")
    def srd(d, lo, size):
        A(f"s_mov_b32 s{d}, s{lo}"); A(f"s_mov_b32 s{d+1}, s{lo+1}")
        A(f"s_mov_b32 s{d+2}, {size}"); A(f"s_mov_b32 s{d+3}, 0x20000")
    def ldsspin(lab, off, val, sleep=0):
        LAB(lab)
        if sleep: A(f"s_sleep {sleep}")
        A(f"ds_read_b32 v10, v9 offset:{off}")
        A("s_waitcnt lgkmcnt(0)")
        A("v_readfirstlane_b32 s58, v10")
        A(f"s_cmp_lt_u32 s58, {val}")
        A(f"s_cbranch_scc1 {lab}")
    def ldsinc(off):
        A("s_mov_b64 exec, 1")
        A("v_mov_b32 v10, 1")
        A(f"ds_add_u32 v9, v10 offset:{off}")
        A("s_mov_b64 exec, -1")
    L.append(HDR.rstrip())
    LDS_BYTES = L_BUF + 4 * NL * 8192
    L.append(f"; @launch grid=(256,1,1) block=(512,1,1) lds={LDS_BYTES}")
    L.append('.amdgcn_target "amdgcn-amd-amdhsa--gfx950"\n.text')
    L.append(f".globl {KN}\n.p2align 8\n.type {KN},@function\n{KN}:")
    A("s_cmp_ge_u32 s2, 256")
    A("s_cbranch_scc1 L_end")
    if stamps or padto: A("s_memrealtime s[92:93]")
    A("s_load_dwordx16 s[4:19], s[0:1], 0")
    A("v_lshrrev_b32 v1, 6, v0")
    A("v_and_b32 v0, 63, v0")
    A("v_readfirstlane_b32 s44, v1              ; wave")
    for i in range(4): A(f"v_mov_b32 v{8+i}, 0")
    A(f"ds_write_b128 v9, v[8:11] offset:{L_CTL}")
    if stamps:
        for i in range(16): A(f"s_mov_b32 s{70+i}, 0")
    A("s_and_b32 s20, s2, 7                     ; x")
    A("s_lshr_b32 s23, s2, 3")
    A("s_and_b32 s24, s23, 3")
    A("s_lshl_b32 s24, s24, 1")
    A("s_xor_b32 s24, s24, s20")
    A("s_lshr_b32 s42, s24, 2")
    A("s_lshl1_add_u32 s42, s23, s42")
    A("s_and_b32 s24, s24, 3")
    A("s_cmp_eq_u32 s24, 0")
    A("s_cselect_b32 s43, 1, 0")
    A("v_lshlrev_b32 v2, 4, v0                  ; lane*16")
    A("v_lshrrev_b32 v3, 4, v0")
    A("v_bfe_u32 v4, v0, 2, 2")
    A("v_and_b32 v5, 3, v0")
    A("s_waitcnt lgkmcnt(0)")
    if stamps: A("s_mov_b32 s85, s92")
    A("s_barrier                                ; A")
    A("s_cmp_ge_u32 s44, 4")
    A("s_cbranch_scc1 L_helper")
    C("---------------- stream waves ----------------")
    RING = 64
    def R(n, lo=0, cnt=4): return f"v[{RING+4*n+lo}:{RING+4*n+lo+cnt-1}]"
    QV, DB, AS, AC1, AC2 = 12, 16, 32, 40, 44
    X, T0, T1, PL, PH, MRUN, LRUN, SC, TK = 48, 49, 50, 51, 52, 54, 55, 56, 57
    STEP = 65536
    A("v_lshlrev_b32 v1, 6, v3")
    A("v_lshl_add_u32 v1, v4, 8, v1")
    A("v_lshl_add_u32 v1, v5, 4, v1")
    A("s_lshr_b32 s45, s44, 1")
    A("s_lshl1_add_u32 s46, s23, s45            ; page")
    A("s_lshl_b32 s56, s46, 21")
    A("s_and_b32 s57, s44, 1")
    A("s_lshl1_add_u32 s57, s20, s57")
    A("s_lshl_b32 s57, s57, 12")
    A("s_add_u32 s48, s56, s57")
    srd(32, 6, "0x8000000")
    srd(36, 8, "0x8000000")
    A("s_cmp_eq_u32 s43, 0")
    A("s_cbranch_scc1 L_go")
    ldsspin("L_go0", L_CTL, 4)
    LAB("L_go")
    def TRC(idx):
        if trace:
            A("s_memrealtime s[66:67]"); A("s_waitcnt lgkmcnt(0)")
            A(f"v_writelane_b32 v58, s66, {idx}")
    if trace: A("v_mov_b32 v58, 0")
    def ld(slot, p, soff):
        if p < 4: A(f"buffer_load_dwordx4 {R(slot)}, v1, s[32:35], {soff} offen offset:{p*1024} nt")
        else:     A(f"buffer_load_dwordx4 {R(slot)}, v2, s[36:39], {soff} offen offset:{(p-4)*1024} nt")
    NT = NI0 + NL
    for n in range(8 * NT):
        if n >= 8 * NI0 and n % 4 == 0: A(f"s_add_u32 m0, s62, {(n - 8*NI0) * 1024}")
        if n >= F0: A(f"s_waitcnt vmcnt({F0-1})")
        p = n % 8
        if n < 8 * NI0: ld(n, p, "s48")
        elif p < 4: A(f"buffer_load_dwordx4 v1, s[32:35], s48 offen offset:{p*1024} nt lds")
        else:       A(f"buffer_load_dwordx4 v2, s[36:39], s48 offen offset:{(p-4)*1024} nt lds")
        if n % 8 == 7: A(f"s_add_u32 s48, s48, {STEP}"); TRC(n // 8)
        if n == int(8 * NP) - 1:
            A("v_mov_b32 v10, 1")
            A(f"ds_write_b32 v9, v10 offset:{L_CTL+8}")
        if n == F0 - 1:
            srd(28, 18, "0x20000000")
            A(f"s_mov_b32 s59, {f32(math.log2(math.e))}")
            A(f"s_mov_b32 s57, {f32(128 ** -0.5)}")
            A(f"v_mov_b32 v{MRUN}, 0xff7fffff")
            A(f"v_mov_b32 v{LRUN}, 0")
            for i in range(8): A(f"v_mov_b32 v{AC1+i}, 0")
            for i in range(8): A(f"v_mov_b32 v{AS+i}, 0")
            A(f"s_mul_i32 s62, s44, {NL*8192}")
            A(f"s_add_u32 s62, s62, {L_BUF}")
            A("v_add_u32 v6, s62, v2")
            A("s_lshl_b32 s52, s46, 8")
            A(f"s_add_u32 s52, s52, {CNT_OFF}")
            A("s_lshl_b32 s58, s45, 10")
            A("v_add_u32 v7, s58, v2")
    STAMP(0)
    A("s_barrier")
    A(f"ds_read_b128 v[{QV}:{QV+3}], v7 offset:{L_Q}")
    A(f"ds_read_b32 v11, v9 offset:{L_CTL+16}")
    A("s_waitcnt lgkmcnt(0)")
    A("v_readfirstlane_b32 s89, v11             ; tag")
    STAMP(1)
    uid = [0]
    def item(base, waits, loads):
        u = uid[0]; uid[0] += 1
        def dpp3(t):
            d = DB + 4 * t
            var = f"row_mask:0xf bank_mask:{1<<t:#x}"
            A(f"v_add_f32_dpp v{X}, v{d+(t+1)%4}, v{d+t} row_ror:12 {var}")
            A(f"v_add_f32_dpp v{X}, v{d+(t+2)%4}, v{X} row_ror:8 {var}")
            A(f"v_add_f32_dpp v{X}, v{d+(t+3)%4}, v{X} row_ror:4 {var}")
        for p in range(4):
            w = waits(p)
            if w is not None: A(f"s_waitcnt vmcnt({w})")
            d = DB + 4 * p
            A(f"v_mfma_f32_16x16x32_bf16 v[{d}:{d+3}], {R(base+p)}, v[{QV}:{QV+3}], 0")
            loads(p)
        A("s_nop 4")
        dpp3(0); dpp3(1); dpp3(2); dpp3(3)
        A(f"v_cvt_pk_bf16_f32 v{X}, 0, v{X}")
        A(f"v_mul_f32 v{X}, s57, v{X}")
        A(f"v_cvt_pk_bf16_f32 v{X}, 0, v{X}")
        A("s_nop 1")
        A(f"v_max_f32_dpp v{T0}, v{X}, v{X} row_ror:4 {FULL}")
        A("s_nop 1")
        A(f"v_max_f32_dpp v{T0}, v{T0}, v{T0} row_ror:8 {FULL}")
        A(f"v_mov_b32 v{T1}, v{T0}"); A("s_nop 1")
        A(f"v_permlane16_swap_b32 v{T0}, v{T1}"); A(f"v_max_f32 v{T0}, v{T0}, v{T1}")
        A(f"v_mov_b32 v{T1}, v{T0}"); A("s_nop 1")
        A(f"v_permlane32_swap_b32 v{T0}, v{T1}"); A(f"v_max_f32 v{T0}, v{T0}, v{T1}")
        A(f"v_mul_f32 v{T0}, s59, v{T0}")
        A(f"v_cmp_gt_f32 vcc, v{T0}, v{MRUN}")
        A(f"s_cbranch_vccz L_nors{u}")
        A(f"v_max_f32 v{T0}, v{T0}, v{MRUN}")
        A(f"v_sub_f32 v{SC}, v{MRUN}, v{T0}")
        A(f"v_exp_f32 v{SC}, v{SC}")
        A(f"v_mov_b32 v{MRUN}, v{T0}")
        A(f"v_mul_f32 v{LRUN}, v{LRUN}, v{SC}")
        for i in range(8): A(f"v_mul_f32 v{AC1+i}, v{AC1+i}, v{SC}")
        LAB(f"L_nors{u}")
        A(f"v_fma_f32 v{X}, v{X}, s59, -v{MRUN}")
        A(f"v_exp_f32 v{X}, v{X}")
        A("s_nop 0")
        A(f"v_cvt_pk_bf16_f32 v{PL}, v{X}, 0")
        A(f"v_cvt_pk_bf16_f32 v{PH}, 0, v{X}")
        A(f"v_add_f32 v{LRUN}, v{LRUN}, v{X}")
        def ab(t):
            a = AS + 2 * t
            for jb in range(4):
                src = PL if jb % 2 == 0 else PH
                rot = (4 * (jb - t)) % 16
                ctl = f"row_ror:{rot}" if rot else "quad_perm:[0,1,2,3]"
                A(f"v_mov_b32_dpp v{a + jb//2}, v{src} {ctl} row_mask:0xf bank_mask:{1<<jb:#x}")
        ab(0); ab(1)
        for t in range(4):
            p = 4 + t
            w = waits(p)
            if w is not None: A(f"s_waitcnt vmcnt({w})")
            a = AS + 2 * t
            A(f"v_mfma_f32_16x16x16_bf16 v[{AC1}:{AC1+3}], {R(base+p,0,2)}, v[{a}:{a+1}], v[{AC1}:{AC1+3}]")
            A(f"v_mfma_f32_16x16x16_bf16 v[{AC2}:{AC2+3}], {R(base+p,2,2)}, v[{a}:{a+1}], v[{AC2}:{AC2+3}]")
            loads(p)
            if t + 2 < 4: ab(t + 2)
    C("catch-up over the buffered items")
    nre = [0]
    def rel(base):
        def f(p):
            ld(base + p, p, "s48"); nre[0] += 1
            if p == 7 and base == 0 and nre[0] == 8: A(f"s_add_u32 s48, s48, {STEP}")
        return f
    def wt(i):
        def f(p):
            rest = 8 * NT - 1 - (8 * i + p)
            return rest + nre[0] if rest < F0 else None
        return f
    for i in range(NI0):
        lo = rel(8 * i) if i < 2 else (lambda p: None)
        item(8 * i, wt(i), lo)
        if i < 2: TRC(NT + i)
        j = i - 2
        if i >= 2 and j < NL:
            rest = 8 * NT - 1 - (8 * (NI0 + j) + 7)
            if rest < F0 and j < NL - 1: A(f"s_waitcnt vmcnt({rest + nre[0]})")
            if j < NL - 1 or rest >= F0:
                for p in range(8): A(f"ds_read_b128 {R(8*i+p)}, v6 offset:{j*8192 + p*1024}")
    for j in range(NL):
        g = j + 2
        if j == NL - 1:
            A(f"s_waitcnt vmcnt({nre[0]})")
            for p in range(8): A(f"ds_read_b128 {R(8*g+p)}, v6 offset:{j*8192 + p*1024}")
        A("s_waitcnt lgkmcnt(0)")
        item(8 * g, lambda p: None, lambda p: None)
    A(f"s_add_u32 s48, s48, {STEP}")
    item(0, lambda p: 15, lambda p: ld(p, p, "s48"))
    TRC(NT + 2)
    item(8, lambda p: 15 - p, lambda p: None)
    A(f"s_mov_b32 s60, {NT + 2}")
    STAMP(2)
    C("steady loop: slots 0..7 hold item s60; static items first, then tickets from the page pool")
    LAB("L_loop")
    A("s_add_u32 s60, s60, 1")
    A(f"s_cmp_lt_u32 s60, {S}")
    A("s_cbranch_scc0 L_dyn")
    A(f"s_add_u32 s48, s48, {STEP}")
    A(f"s_cmp_lt_u32 s60, {S-1}")
    A("s_cbranch_scc1 L_body")
    A("s_branch L_claim")
    LAB("L_dyn")
    A("s_waitcnt vmcnt(8)")
    LAB("L_tk")
    A(f"v_readfirstlane_b32 s61, v{TK}")
    A("s_bitcmp1_b32 s61, 0")
    A("s_cbranch_scc0 L_tkwait")
    A(f"s_cmp_lt_u32 s61, {2*(512 - 16*S)}")
    A("s_cbranch_scc0 L_last")
    A(f"s_add_u32 s61, s61, {32*S - 1}")
    A("s_lshl_b32 s61, s61, 11")
    A("s_add_u32 s48, s56, s61")
    LAB("L_claim")
    A(f"v_mov_b32 v{TK}, 2")
    A("s_mov_b64 exec, 1")
    A(f"buffer_atomic_add v{TK}, v9, s[28:31], s52 offen sc0 sc1")
    A("s_mov_b64 exec, -1")
    LAB("L_body")
    item(0, lambda p: 7, lambda p: ld(p, p, "s48"))
    if trace: A("s_mov_b32 m0, s60")
    TRC("m0")
    A("s_branch L_loop")
    LAB("L_last")
    ldsinc(L_CTL + 12)
    item(0, lambda p: 7 - p, lambda p: None)
    STAMP(4)
    if trace:
        TRC(63)
        A("s_lshl2_add_u32 s58, s2, s44"); A("s_lshl_b32 s58, s58, 8"); A("s_add_u32 s58, s58, 0x900000")
        A("v_lshlrev_b32 v59, 2, v0")
        A("buffer_store_dword v58, v59, s[28:31], s58 offen")
    if stamps: A("s_mov_b32 s80, s60")
    A(f"v_add_f32_dpp v{LRUN}, v{LRUN}, v{LRUN} row_ror:4 {FULL}")
    A(f"s_mul_i32 s58, s44, 2560")
    A("v_lshlrev_b32 v8, 3, v0")
    A(f"v_add_f32_dpp v{LRUN}, v{LRUN}, v{LRUN} row_ror:8 {FULL}")
    A(f"v_mov_b32 v{T1}, v{LRUN}")
    A("v_add_u32 v10, s58, v2")
    A("v_add_u32 v11, s58, v8")
    A(f"v_permlane16_swap_b32 v{LRUN}, v{T1}"); A(f"v_add_f32 v{LRUN}, v{LRUN}, v{T1}")
    A(f"v_mov_b32 v{T1}, v{LRUN}")
    A(f"ds_write_b128 v10, v[{AC1}:{AC1+3}] offset:{L_OC}")
    A(f"ds_write_b128 v10, v[{AC2}:{AC2+3}] offset:{L_OC+1024}")
    A(f"v_permlane32_swap_b32 v{LRUN}, v{T1}"); A(f"v_add_f32 v{LRUN}, v{LRUN}, v{T1}")
    A(f"ds_write_b64 v11, v[{MRUN}:{LRUN}] offset:{L_OC+2048}")
    A("v_lshlrev_b32 v6, 8, v4")
    A("v_lshl_add_u32 v6, v5, 6, v6")
    A("v_lshl_add_u32 v6, v3, 4, v6")
    A("v_add_u32 v6, s58, v6")
    A("v_lshl_add_u32 v7, v3, 3, s58")
    A("s_lshl3_add_u32 s86, s46, s20")
    A("s_lshl_b32 s86, s86, 11")
    A(f"s_add_u32 s86, s86, {OG_OFF}")
    A("v_lshl_add_u32 v10, v3, 8, v2            ; h*512 + (l%16)*16")
    A("s_waitcnt lgkmcnt(0)")
    A("s_barrier                                ; C")
    A("s_bitcmp1_b32 s44, 0")
    A("s_cbranch_scc1 L_s13")
    C("waves 0 and 2: merge the two waves of a page and publish the partial")
    for w in range(2):
        A(f"ds_read_b64 v[{16+2*w}:{17+2*w}], v7 offset:{L_OC+w*2560+2048}")
    for w in range(2):
        A(f"ds_read_b128 v[{64+8*w}:{67+8*w}], v6 offset:{L_OC+w*2560}")
        A(f"ds_read_b128 v[{68+8*w}:{71+8*w}], v6 offset:{L_OC+w*2560+1024}")
    A("s_waitcnt lgkmcnt(4)")
    A("v_max_f32 v24, v16, v18")
    A("v_sub_f32 v16, v16, v24"); A("v_sub_f32 v18, v18, v24")
    A("v_exp_f32 v16, v16"); A("v_exp_f32 v18, v18")
    A("s_nop 0")
    A("v_mul_f32 v25, v16, v17")
    A("v_fmac_f32 v25, v18, v19")
    A("v_rcp_f32 v26, v25")
    A("v_log_f32 v42, v25")
    A("s_nop 0")
    A("v_mul_f32 v16, v16, v26"); A("v_mul_f32 v18, v18, v26")
    A("v_add_f32 v42, v42, v24")
    A("v_mov_b32 v46, v42")
    A("v_xor_b32 v29, s89, v42")
    A("s_waitcnt lgkmcnt(0)")
    for i in range(8): A(f"v_mul_f32 v{64+i}, v{64+i}, v16")
    for i in range(8): A(f"v_fmac_f32 v{64+i}, v{72+i}, v18")
    A("v_cvt_pk_bf16_f32 v40, v64, v68")
    A("v_cvt_pk_bf16_f32 v41, v65, v69")
    A("v_cvt_pk_bf16_f32 v44, v66, v70")
    A("v_cvt_pk_bf16_f32 v45, v67, v71")
    A("v_bitop3_b32 v43, v40, v41, v29 bitop3:0x96")
    A("v_bitop3_b32 v47, v44, v45, v29 bitop3:0x96")
    A("buffer_store_dwordx4 v[40:43], v10, s[28:31], s86 offen sc1")
    A("buffer_store_dwordx4 v[44:47], v10, s[28:31], s86 offen offset:256 sc1")
    A("s_waitcnt vmcnt(0)")
    A("s_barrier                                ; D")
    STAMP(5)
    if stamps: A("s_barrier"); A("s_barrier")
    A("s_branch L_fin")
    LAB("L_tkwait")
    A("s_waitcnt vmcnt(0)")
    A(f"v_or_b32 v{TK}, 1, v{TK}")
    A("s_nop 0")
    A("s_branch L_tk")
    LAB("L_s13")
    A("s_cmp_eq_u32 s44, 1")
    A("s_cbranch_scc1 L_hop2")
    C("wave 3 of workgroup 0: once every workgroup has published, advance the epoch word")
    A("s_cmp_eq_u32 s2, 0")
    if stamps:
        A("s_cbranch_scc1 L_ew")
        A("s_barrier"); A("s_barrier"); A("s_barrier")
        A("s_branch L_fin")
        LAB("L_ew")
    else:
        A("s_cbranch_scc0 L_fin")
    A("s_barrier                                ; D")
    A("s_barrier                                ; E")
    A("s_barrier                                ; F")
    A("v_lshrrev_b32 v10, 3, v0")
    A("v_lshlrev_b32 v10, 15, v10")
    A("v_and_b32 v11, 7, v0")
    A("v_lshl_add_u32 v10, v11, 11, v10         ; slot (2j*8 + x)")
    for i in range(4): A(f"s_mov_b32 s{48+i}, {OG_OFF + 0x40000*i}")
    A("s_mov_b32 s88, 0")
    LAB("L_epoll")
    for i in range(4): A(f"buffer_load_dwordx4 v[{16+4*i}:{19+4*i}], v10, s[28:31], s{48+i} offen sc1")
    A("s_waitcnt vmcnt(0)")
    for i in range(4):
        A(f"v_bitop3_b32 v{32+i}, v{16+4*i}, v{17+4*i}, v{18+4*i} bitop3:0x96")
        A(f"v_bitop3_b32 v{32+i}, v{32+i}, v{19+4*i}, s89 bitop3:0x96")
    A("v_or3_b32 v32, v32, v33, v34")
    A("v_or_b32 v32, v32, v35")
    A("v_cmp_ne_u32 vcc, 0, v32")
    A("s_cbranch_vccz L_enext")
    A("s_add_u32 s88, s88, 1")
    A(f"s_cmp_gt_u32 s88, {spin}")
    A("s_cbranch_scc0 L_epoll")
    LAB("L_enext")
    A("s_mov_b64 exec, 1")
    A("v_mov_b32 v17, s89")
    A("buffer_store_dword v17, v9, s[28:31], 0 offen sc1")
    A("s_mov_b64 exec, -1")
    A("s_branch L_fin")
    C("wave 1: sum the 32 per-head contributions of 2 rows x 8 columns")
    LAB("L_hop2")
    srd(40, 14, "0x2000")
    A("s_lshl_b32 s86, s2, 12")
    A(f"s_add_u32 s86, s86, {Y_OFF}")
    A("s_lshr_b32 s87, s2, 6")
    A("s_lshl_b32 s87, s87, 11")
    A("s_and_b32 s88, s2, 63")
    A("s_lshl4_add_u32 s87, s88, s87")
    A("v_lshlrev_b32 v10, 1, v0")
    A("s_mov_b32 s88, 0")
    A("s_barrier                                ; D")
    A("s_barrier                                ; E")
    A("s_barrier                                ; F")
    LAB("L_h2poll")
    for i in range(4):
        A(f"buffer_load_dwordx4 v[{16+4*i}:{19+4*i}], v2, s[28:31], s86 offen offset:{1024*i} sc1")
    for i in range(4):
        A(f"s_waitcnt vmcnt({3-i})")
        r = 16 + 4 * i
        A(f"v_bitop3_b32 v{32+2*i}, v{r}, v{r+2}, s89 bitop3:0x96")
        A(f"v_bitop3_b32 v{33+2*i}, v{r+1}, v{r+3}, s89 bitop3:0x96")
    A("v_or3_b32 v32, v32, v33, v34")
    A("v_or3_b32 v35, v35, v36, v37")
    A("v_or3_b32 v32, v32, v38, v39")
    A("v_or_b32 v32, v32, v35")
    A("v_cmp_ne_u32 vcc, 0, v32")
    A("s_and_b64 exec, exec, vcc")
    A("s_cbranch_execz L_h2ok")
    A("s_add_u32 s88, s88, 1")
    A(f"s_cmp_gt_u32 s88, {spin}")
    A("s_cbranch_scc0 L_h2poll")
    LAB("L_h2ok")
    A("s_mov_b64 exec, -1")
    STAMP(6)
    if stamps: A("s_mov_b32 s83, s88")
    A("v_add_f32 v16, v16, v20"); A("v_add_f32 v17, v17, v21")
    A("v_add_f32 v24, v24, v28"); A("v_add_f32 v25, v25, v29")
    A("v_add_f32 v16, v16, v24"); A("v_add_f32 v17, v17, v25")
    A("s_nop 0")
    A(f"v_add_f32_dpp v16, v16, v16 row_ror:8 {FULL}")
    A(f"v_add_f32_dpp v17, v17, v17 row_ror:8 {FULL}")
    A("v_mov_b32 v18, v16"); A("v_mov_b32 v19, v17"); A("s_nop 0")
    A("v_permlane16_swap_b32 v16, v18"); A("v_permlane16_swap_b32 v17, v19")
    A("v_add_f32 v16, v16, v18"); A("v_add_f32 v17, v17, v19")
    A("v_mov_b32 v18, v16"); A("v_mov_b32 v19, v17"); A("s_nop 0")
    A("v_permlane32_swap_b32 v16, v18"); A("v_permlane32_swap_b32 v17, v19")
    A("v_add_f32 v16, v16, v18"); A("v_add_f32 v17, v17, v19")
    A("v_cvt_pk_bf16_f32 v16, v16, v17")
    if padto:
        LAB("L_pad")
        A("s_memrealtime s[66:67]"); A("s_waitcnt lgkmcnt(0)"); A("s_sub_u32 s66, s66, s92")
        A(f"s_cmp_lt_u32 s66, {padto}"); A("s_cbranch_scc1 L_pad")
    A("s_mov_b64 exec, 0xff")
    A(f"buffer_store_short v16, v10, s[40:43], s87 offen {outpol}")
    A(f"buffer_store_short_d16_hi v16, v10, s[40:43], s87 offen offset:1024 {outpol}")
    A("s_mov_b64 exec, -1")
    A("s_branch L_fin")

    C("---------------- helper waves ----------------")
    LAB("L_helper")
    A("s_setprio 3")
    A("s_load_dword s89, s[18:19], 0")
    A("s_sub_u32 s56, s44, 4                    ; hw")
    srd(28, 18, "0x20000000")
    A("s_cmp_eq_u32 s43, 0")
    A("s_cbranch_scc1 L_noprod")
    C("q producer: 64 columns for all batches; this wave: wq rows [128hw, +128)")
    srd(36, 10, "0x400000")
    A("s_and_b32 s40, s42, 7")
    A("s_lshr_b32 s41, s42, 3")
    A("s_lshl3_add_u32 s48, s40, s41            ; kvh*8 + b")
    A("s_lshl_b32 s49, s48, 7")
    A("s_lshl_b32 s50, s56, 20")
    A("s_add_u32 s49, s49, s50")
    A("v_lshrrev_b32 v6, 3, v0")
    A("v_and_b32 v7, 7, v0")
    A("v_lshlrev_b32 v8, 13, v6")
    A("v_lshl_add_u32 v8, v7, 4, v8")
    A("v_and_b32 v11, 16, v0")
    A("v_lshlrev_b32 v11, 1, v11")
    A("v_xor_b32 v8, v8, v11")
    A("v_xor_b32 v11, 64, v8")
    A("s_lshl_b32 s50, s56, 14")
    A(f"s_add_u32 s50, s50, {L_STG}")
    for i in range(16):
        A(f"s_add_u32 m0, s50, {i*1024}")
        if i: A(f"s_add_u32 s49, s49, {8*8192}")
        else: A("s_nop 0")
        A(f"buffer_load_dwordx4 v{11 if i % 2 else 8}, s[36:39], s49 offen nt lds")
    srd(32, 4, "0x2000")
    A("v_lshlrev_b32 v11, 10, v7")
    A("v_lshl_add_u32 v11, v3, 4, v11")
    A("s_lshl_b32 s51, s56, 8")
    A("s_mov_b32 exec_lo, 0x00ff00ff"); A("s_mov_b32 exec_hi, 0x00ff00ff")
    for s in range(4):
        A(f"buffer_load_dwordx4 v[{96+4*s}:{99+4*s}], v11, s[32:35], s51 offen offset:{64*s}")
    A("s_lshl_b32 s52, s42, 8")
    A(f"s_add_u32 s52, s52, {CNT_OFF}")
    A("s_mov_b64 exec, 1")
    A("v_mov_b32 v10, 1")
    A("buffer_store_dword v10, v9, s[28:31], s52 offen sc1")
    ldsinc(L_CTL)
    STAMP(3)
    A("v_lshl_add_u32 v12, v3, 3, v4")
    A("v_lshlrev_b32 v12, 7, v12")
    A("v_lshl_add_u32 v12, v5, 3, v12")
    A("v_add_u32 v12, s50, v12")
    A("v_bfe_u32 v17, v0, 3, 2")
    A("v_lshl_add_u32 v112, v17, 5, v12")
    for ct in range(1, 4): A(f"v_xor_b32 v{112+ct}, {32*ct}, v112")
    A("v_add_u32 v13, s50, v2")
    A("s_lshl_b32 s51, s56, 10")
    A("v_bfe_u32 v16, v0, 2, 3")
    A("v_lshlrev_b32 v14, 8, v5")
    A("v_lshl_add_u32 v14, v16, 4, v14")
    A("v_add_u32 v14, s51, v14")
    A("v_bfe_u32 v15, v0, 3, 2")
    A("v_lshlrev_b32 v15, 15, v15")
    A("v_lshl_add_u32 v15, v7, 4, v15")
    A("s_lshl2_add_u32 s48, s48, s56")
    A("s_lshl_b32 s48, s48, 7")
    A(f"s_add_u32 s48, s48, {QG_OFF}")
    A("s_waitcnt vmcnt(0) lgkmcnt(0)")
    STAMP(0)
    for ks in range(4):
        for ct in range(4):
            r = 128 + 16 * ks + 4 * ct
            A(f"ds_read_b64_tr_b16 v[{r}:{r+1}], v{112+ct} offset:{ks*4096}")
            A(f"ds_read_b64_tr_b16 v[{r+2}:{r+3}], v{112+ct} offset:{ks*4096 + 512}")
    for ks in range(4):
        for ct in range(4):
            rem = 2 * (15 - (4 * ks + ct))
            A(f"s_waitcnt lgkmcnt({min(rem, 15)})")
            r = 128 + 16 * ks + 4 * ct
            c = "0" if ks == 0 else f"v[{16+4*ct}:{19+4*ct}]"
            A(f"v_mfma_f32_16x16x32_bf16 v[{16+4*ct}:{19+4*ct}], v[{r}:{r+3}], v[{96+4*ks}:{99+4*ks}], {c}")
    A("s_nop 4")
    for ct in range(4):
        if ct: A("s_nop 0")
        A(f"ds_write_b128 v13, v[{16+4*ct}:{19+4*ct}] offset:{1024*ct}")
    A("s_waitcnt lgkmcnt(0)")
    ldsinc(L_CTL + 4)
    ldsspin("L_red", L_CTL + 4, 4)
    for w in range(4):
        A(f"ds_read_b128 v[{16+4*w}:{19+4*w}], v14 offset:{L_STG + 16384*w}")
    A("s_add_u32 s90, s89, 0x9e3779b1")
    A("s_or_b32 s90, s90, 1")
    A("s_waitcnt lgkmcnt(0)")
    for i in range(4):
        A(f"v_add_f32 v{16+i}, v{16+i}, v{20+i}")
        A(f"v_add_f32 v{24+i}, v{24+i}, v{28+i}")
    for i in range(4): A(f"v_add_f32 v{16+i}, v{16+i}, v{24+i}")
    A("v_cvt_pk_bf16_f32 v20, v16, v17")
    A("v_cvt_pk_bf16_f32 v21, v18, v19")
    A("v_xor_b32 v22, s90, v20")
    A("v_xor_b32 v23, s90, v21")
    A("s_mov_b32 exec_hi, 0")
    A("buffer_store_dwordx4 v[20:23], v15, s[28:31], s48 offen sc1")
    A("s_mov_b64 exec, -1")
    STAMP(1)
    LAB("L_noprod")
    A("s_waitcnt lgkmcnt(0)")
    A("s_add_u32 s89, s89, 0x9e3779b1")
    A("s_or_b32 s89, s89, 1")
    A("s_cmp_lt_u32 s56, 2")
    A("s_cbranch_scc0 L_hwaitB")
    C("waves 4 and 5: fetch q of page 2j + hw")
    A("s_lshl1_add_u32 s46, s23, s56")
    A("s_and_b32 s40, s46, 7")
    A("s_lshr_b32 s41, s46, 3")
    A("v_lshlrev_b32 v14, 10, v5")
    A("v_lshl_add_u32 v14, v3, 8, v14")
    A("v_lshrrev_b32 v15, 1, v4")
    A("v_lshl_add_u32 v14, v15, 7, v14")
    A("v_and_b32 v15, 1, v4")
    A("v_lshl_add_u32 v14, v15, 5, v14")
    A("s_lshr_b32 s53, s41, 1")
    A("s_lshl_b32 s53, s53, 15")
    A("s_lshl_b32 s54, s40, 12")
    A("s_add_u32 s53, s53, s54")
    A("s_and_b32 s54, s41, 1")
    A("s_lshl_b32 s54, s54, 6")
    A("s_add_u32 s53, s53, s54")
    A(f"s_add_u32 s53, s53, {QG_OFF}")
    A("s_lshl_b32 s54, s56, 10")
    A("v_add_u32 v15, s54, v2")
    A("v_mov_b32 v11, s89")
    A(f"ds_write_b32 v9, v11 offset:{L_CTL+16}")
    ldsspin("L_prog", L_CTL + 8, 1, sleep=2)
    A("s_mov_b32 s54, 0")
    LAB("L_qpoll")
    A("buffer_load_dwordx4 v[24:27], v14, s[28:31], s53 offen sc1")
    A("buffer_load_dwordx4 v[28:31], v14, s[28:31], s53 offen offset:16 sc1")
    A("s_waitcnt vmcnt(0)")
    A("v_bitop3_b32 v32, v24, v26, s89 bitop3:0x96")
    A("v_bitop3_b32 v33, v25, v27, s89 bitop3:0x96")
    A("v_bitop3_b32 v34, v28, v30, s89 bitop3:0x96")
    A("v_bitop3_b32 v35, v29, v31, s89 bitop3:0x96")
    A("v_or3_b32 v36, v32, v33, v34")
    A("v_or_b32 v36, v36, v35")
    A("v_cmp_ne_u32 vcc, 0, v36")
    A("s_and_b64 exec, exec, vcc")
    A("s_cbranch_execz L_qok")
    A("s_add_u32 s54, s54, 1")
    A(f"s_cmp_gt_u32 s54, {spin}")
    A("s_cbranch_scc0 L_qpoll")
    LAB("L_qok")
    A("s_mov_b64 exec, -1")
    A(f"ds_write_b64 v15, v[24:25] offset:{L_Q}")
    A(f"ds_write_b64 v15, v[28:29] offset:{L_Q+8}")
    if stamps: A("s_mov_b32 s82, s54")
    A("s_waitcnt lgkmcnt(0)")
    STAMP(2)
    LAB("L_hwaitB")
    A("s_barrier                                ; B")
    A("s_setprio 0")
    C("output projection role: head h, 64 columns c8; this wave: 16-column tile hw, batches 2hw, 2hw+1 for the merge")
    srd(36, 12, "0x400000")
    A("s_bfe_u32 s60, s2, 0x20003")
    A("s_lshl2_add_u32 s59, s20, s60            ; h")
    A("s_lshr_b32 s60, s2, 5                    ; c8")
    A("s_lshl_b32 s48, s59, 17")
    A("s_lshl_b32 s50, s60, 7")
    A("s_add_u32 s48, s48, s50")
    A("s_lshl_b32 s50, s56, 15")
    A("s_add_u32 s48, s48, s50")
    A("v_bfe_u32 v6, v0, 3, 1")
    A("v_lshlrev_b32 v6, 11, v6")
    A("v_bfe_u32 v7, v0, 4, 1")
    A("v_lshl_add_u32 v6, v7, 10, v6")
    A("v_bfe_u32 v7, v0, 5, 1")
    A("v_lshl_add_u32 v6, v7, 12, v6")
    A("v_and_b32 v11, 7, v0")
    A("v_lshlrev_b32 v11, 4, v11")
    A("v_lshlrev_b32 v7, 5, v7")
    A("v_xor_b32 v11, v11, v7")
    A("v_add_u32 v7, v6, v11")
    A("v_xor_b32 v6, 64, v7")
    A("s_lshl_b32 s49, s56, 12")
    A(f"s_add_u32 s49, s49, {L_STG}")
    A("v_lshrrev_b32 v8, 1, v3")
    A("v_lshlrev_b32 v8, 5, v8")
    A("v_and_b32 v11, 1, v3")
    A("v_add_u32 v8, v8, v11")
    A("v_lshl_add_u32 v8, v4, 2, v8")
    A("v_lshlrev_b32 v8, 7, v8")
    A("v_lshl_add_u32 v8, v5, 3, v8")
    A("v_xor_b32 v11, s56, v4")
    A("v_lshl_add_u32 v8, v11, 5, v8")
    A("v_lshrrev_b32 v11, 5, v0")
    A("v_and_b32 v13, 31, v0")
    A("v_lshlrev_b32 v12, 17, v11")
    A("v_lshl_add_u32 v12, v13, 4, v12")
    A("s_lshl_b32 s51, s56, 18")
    A("s_lshl_b32 s52, s20, 14")
    A("s_add_u32 s51, s51, s52")
    A("s_and_b32 s52, s59, 3")
    A("s_lshl_b32 s52, s52, 9")
    A("s_add_u32 s51, s51, s52")
    for i in range(4): A(f"s_add_u32 s{52+i}, s51, {OG_OFF + 4096*i}")
    A("s_mul_i32 s51, s56, 544")
    A("v_mul_u32_u24 v11, 272, v11")
    A("v_lshl_add_u32 v13, v13, 3, v11")
    A("v_add_u32 v13, s51, v13")
    A("v_and_b32 v15, 1, v0")
    A("v_lshl_add_u32 v15, v4, 1, v15")
    A("v_mul_u32_u24 v15, 272, v15")
    A("v_lshl_add_u32 v15, v3, 4, v15")
    A("v_bfe_u32 v16, v0, 3, 1")
    A("v_lshl_add_u32 v14, v3, 6, v16")
    A("v_lshlrev_b32 v14, 12, v14")
    A("v_and_b32 v11, 7, v0")
    A("v_lshl_add_u32 v14, v11, 4, v14")
    A("s_lshl2_add_u32 s57, s60, s56")
    A("s_lshl_b32 s64, s57, 1")
    A("s_and_b32 s64, s64, 31")
    A("s_xor_b32 s64, s64, s59")
    A("v_xor_b32 v16, s64, v16")
    A("v_lshl_add_u32 v14, v16, 7, v14          ; Y voffset")
    A("s_lshl_b32 s57, s57, 13")
    A(f"s_add_u32 s57, s57, {Y_OFF}")
    A("s_mov_b32 s63, 0xffff0000")
    A("s_mov_b32 s61, 0")
    ldsspin("L_wol", L_CTL + 12, 4, sleep=3)
    for i in range(4):
        A(f"s_add_u32 m0, s49, {i*1024}")
        A("s_nop 0")
        A(f"buffer_load_dwordx4 v{6 if i % 2 else 7}, s[36:39], s48 offen nt lds")
        A("s_add_u32 s48, s48, 8192")
    STAMP(5)
    A("s_barrier                                ; C")
    A("s_barrier                                ; D")
    STAMP(6)
    LAB("L_h1poll")
    for sp in range(8):
        r = 32 + 4 * sp
        A(f"buffer_load_dwordx4 v[{r}:{r+3}], v12, s[28:31], s{52 + sp//2} offen offset:{2048*(sp%2)} sc1")
    for sp in range(8):
        r = 32 + 4 * sp
        A(f"s_waitcnt vmcnt({7-sp})")
        A(f"v_bitop3_b32 v{64+sp}, v{r}, v{r+1}, v{r+2} bitop3:0x96")
        A(f"v_bitop3_b32 v{64+sp}, v{64+sp}, v{r+3}, s89 bitop3:0x96")
        if sp in (2, 4, 6): A(f"v_or3_b32 v64, v64, v{64+sp-1}, v{64+sp}")
    A("v_or_b32 v64, v64, v71")
    A("v_cmp_ne_u32 vcc, 0, v64")
    A("s_and_b64 exec, exec, vcc")
    A("s_cbranch_execz L_h1ok")
    A("s_add_u32 s61, s61, 1")
    A(f"s_cmp_gt_u32 s61, {spin}")
    A("s_cbranch_scc0 L_h1poll")
    LAB("L_h1ok")
    A("s_mov_b64 exec, -1")
    STAMP(7)
    if stamps: A("s_mov_b32 s83, s61")
    A("v_max3_f32 v72, v34, v38, v42")
    A("v_max3_f32 v73, v46, v50, v54")
    A("v_max3_f32 v72, v72, v58, v62")
    A("v_max_f32 v72, v72, v73")
    for sp in range(8): A(f"v_sub_f32 v{64+sp}, v{34+4*sp}, v72")
    for sp in range(8):
        r = 32 + 4 * sp
        A(f"v_exp_f32 v{64+sp}, v{64+sp}")
        A(f"v_and_b32 v{r+2}, s63, v{r}")
        A(f"v_and_b32 v{r+3}, s63, v{r+1}")
        A(f"v_lshlrev_b32 v{r}, 16, v{r}")
        A(f"v_lshlrev_b32 v{r+1}, 16, v{r+1}")
    A("v_add_f32 v72, v64, v65"); A("v_add_f32 v73, v66, v67")
    A("v_add_f32 v74, v68, v69"); A("v_add_f32 v75, v70, v71")
    A("v_add_f32 v72, v72, v73"); A("v_add_f32 v74, v74, v75")
    A("v_add_f32 v72, v72, v74")
    A("v_rcp_f32 v72, v72")
    for h2 in range(2):
        A(f"v_pk_mul_f32 v[{32+2*h2}:{33+2*h2}], v[{32+2*h2}:{33+2*h2}], v[64:65] op_sel_hi:[1,0]")
    for sp in range(1, 8):
        w = 64 + (sp & ~1)
        sel = "op_sel:[0,1,0] op_sel_hi:[1,1,1]" if sp % 2 else "op_sel_hi:[1,0,1]"
        for h2 in range(2):
            A(f"v_pk_fma_f32 v[{32+2*h2}:{33+2*h2}], v[{32+4*sp+2*h2}:{33+4*sp+2*h2}], v[{w}:{w+1}], v[{32+2*h2}:{33+2*h2}] {sel}")
    for i in range(4): A(f"v_mul_f32 v{32+i}, v{32+i}, v72")
    A("v_cvt_pk_bf16_f32 v36, v32, v34")
    A("v_cvt_pk_bf16_f32 v37, v33, v35")
    A(f"ds_write_b64 v13, v[36:37] offset:{L_OI}")
    A("s_waitcnt lgkmcnt(0)")
    A("s_barrier                                ; E")
    for f in range(4):
        r = 96 + 4 * f
        row = 64 * (f % 2) + 16 * (f // 2)
        A(f"ds_read_b64_tr_b16 v[{r}:{r+1}], v8 offset:{L_STG + row*128}")
        A(f"ds_read_b64_tr_b16 v[{r+2}:{r+3}], v8 offset:{L_STG + (row+2)*128}")
        A(f"ds_read_b128 v[{32+4*f}:{35+4*f}], v15 offset:{L_OI + 64*f}")
    for f in range(4):
        A(f"s_waitcnt lgkmcnt({9-3*f})")
        c = "0" if f == 0 else "v[76:79]"
        A(f"v_mfma_f32_16x16x32_bf16 v[76:79], v[{32+4*f}:{35+4*f}], v[{96+4*f}:{99+4*f}], {c}")
    A("s_nop 7")
    A("v_xor_b32 v78, s89, v76"); A("v_xor_b32 v79, s89, v77")
    A("buffer_store_dwordx4 v[76:79], v14, s[28:31], s57 offen sc1")
    A("s_waitcnt vmcnt(0)")
    A("s_barrier                                ; F")
    STAMP(8)
    LAB("L_fin")
    if stamps:
        A("s_waitcnt vmcnt(0)")
        STAMP(9)
        A("s_lshl_b32 s48, s2, 3")
        A("s_add_u32 s48, s48, s44")
        A("s_lshl_b32 s48, s48, 6")
        A(f"s_add_u32 s48, s48, {ST_OFF}")
        A("v_mov_b32 v1, 0")
        A("s_mov_b64 exec, 1")
        for q in range(4):
            for i in range(4): A(f"v_mov_b32 v{12+i}, s{70+4*q+i}")
            A(f"buffer_store_dwordx4 v[12:15], v1, s[28:31], s48 offen offset:{16*q}")
            A("s_nop 1")
    LAB("L_end")
    A("s_endpgm")
    nv = max(192, RING + 32 * NI0)
    L.append('.section .rodata,"a"\n.p2align 6')
    L.append(f".amdhsa_kernel {KN}")
    L.append(f"  .amdhsa_next_free_vgpr {nv}\n  .amdhsa_next_free_sgpr 96\n  .amdhsa_accum_offset {nv}")
    L.append("  .amdhsa_group_segment_fixed_size 0\n  .amdhsa_kernarg_size 64\n  .amdhsa_float_denorm_mode_32 3")
    L.append("  .amdhsa_user_sgpr_count 2\n  .amdhsa_user_sgpr_kernarg_segment_ptr 1\n  .amdhsa_system_sgpr_workgroup_id_x 1")
    L.append(".end_amdhsa_kernel")
    open(name, "w").write("\n".join(L) + "\n")

if __name__ == "__main__":
    gen("k8.s")
    gen("k8_st.s", stamps=True)
    gen("k8_s26_st.s", stamps=True, S=26)
    gen("k8_s22_st.s", stamps=True, S=22)
```

```python
import sys, struct, math
KN = "standalone__gqa_block_cached__sampling_kernel"
HDR = open("standalone__gqa_block_cached__sampling.s.ref").read().split("; Override launch")[0]

CFG_OFF, CNT_OFF, PRB_OFF, QG_OFF, OG_OFF, Y_OFF, ST_OFF = 0x800, 0x1000, 0x8000, 0x10000, 0x80000, 0x100000, 0x800000
L_Q, L_CTL, L_OC, L_STG = 0x0, 0x400, 0x800, 0x3000
L_OI = 0x8000
L_BUF = 0x13000
def f32(x): return struct.unpack("<I", struct.pack("<f", x))[0]
FULL = "row_mask:0xf bank_mask:0xf"

def gen(name, stamps=False, spin=100000, F0=7, NI0=6, S=26, NP=7, NL=2, padto=0, probe=True, cfix=0, split2=False, early=False, nprb=3, tdel=18, d2=False, d1=6, pre2=False, pmode='c', F1=12, F1p=0, fsel='prod', F0p=0, DP=0, wpre=False, hprio=0, pace=None):
    L = []
    def A(s): L.append("  " + s)
    def C(s): L.append("  ; " + s)
    def LAB(s): L.append(s + ":")
    def STAMP(i):
        if stamps:
            A("s_memrealtime s[66:67]"); A("s_waitcnt lgkmcnt(0)"); A(f"s_mov_b32 s{70+i}, s66")
    def srd(d, lo, size):
        A(f"s_mov_b32 s{d}, s{lo}"); A(f"s_mov_b32 s{d+1}, s{lo+1}")
        A(f"s_mov_b32 s{d+2}, {size}"); A(f"s_mov_b32 s{d+3}, 0x20000")
    def ldsspin(lab, off, val, sleep=0):
        LAB(lab)
        if sleep: A(f"s_sleep {sleep}")
        A(f"ds_read_b32 v10, v9 offset:{off}")
        A("s_waitcnt lgkmcnt(0)")
        A("v_readfirstlane_b32 s58, v10")
        A(f"s_cmp_lt_u32 s58, {val}")
        A(f"s_cbranch_scc1 {lab}")
    def ldsinc(off):
        A("s_mov_b64 exec, 1")
        A("v_mov_b32 v10, 1")
        A(f"ds_add_u32 v9, v10 offset:{off}")
        A("s_mov_b64 exec, -1")
    L.append(HDR.rstrip())
    LDS_BYTES = L_BUF + 4 * NL * 8192
    L.append(f"; @launch grid=(256,1,1) block=(512,1,1) lds={LDS_BYTES}")
    L.append("""; One launch, one workgroup per CU. Waves 0-3 stream K/V (items of 16 keys, online softmax, MFMA for
; Hand-offs go through d_ws as 16-byte units that carry a check word built from a per-launch tag.""")
    L.append('.amdgcn_target "amdgcn-amd-amdhsa--gfx950"\n.text')
    L.append(f".globl {KN}\n.p2align 8\n.type {KN},@function\n{KN}:")
    A("s_cmp_ge_u32 s2, 256")
    A("s_cbranch_scc1 L_end")
    if stamps or padto or pace: A("s_memrealtime s[92:93]")
    A("s_load_dwordx16 s[4:19], s[0:1], 0")
    A("v_lshrrev_b32 v1, 6, v0")
    A("v_and_b32 v0, 63, v0")
    A("v_readfirstlane_b32 s44, v1              ; wave")
    for i in range(4): A(f"v_mov_b32 v{8+i}, 0")
    A(f"ds_write_b128 v9, v[8:11] offset:{L_CTL}")
    if stamps:
        for i in range(16): A(f"s_mov_b32 s{70+i}, 0")
    A("s_and_b32 s20, s2, 1"); A("s_bfe_u32 s21, s2, 0x10001"); A("s_bfe_u32 s22, s2, 0x10002"); A("s_lshr_b32 s23, s2, 3")
    A("s_lshl1_add_u32 s45, s22, s20            ; split")
    A("s_and_b32 s24, s20, s23"); A("s_xor_b32 s21, s21, s24")
    A("s_lshl1_add_u32 s46, s23, s21")
    A("s_lshl2_add_u32 s47, s46, s45")
    if pmode == 'c':
        A("s_bfe_u32 s24, s46, 0x10003"); A("s_lshl_b32 s24, s24, 1")
    elif pmode == 'a': A("s_mov_b32 s24, 0")
    elif pmode == 'b': A("s_mov_b32 s24, 2")
    elif pmode == 'd':
        A("s_bfe_u32 s24, s46, 0x10003"); A("s_lshl_b32 s24, s24, 1"); A("s_xor_b32 s24, s24, 3")
    elif pmode == 'e':
        A("s_bfe_u32 s24, s46, 0x20003")
    elif pmode == 'f':
        A("s_and_b32 s24, s46, 1"); A("s_lshl_b32 s24, s24, 1")
    elif pmode == 'g':
        A("s_and_b32 s24, s46, 1"); A("s_xor_b32 s24, s24, 1"); A("s_lshl_b32 s24, s24, 1")
    A("s_cmp_eq_u32 s24, s45")
    A("s_cselect_b32 s43, 1, 0                  ; q producer flag")
    A("s_lshl_b32 s52, s46, 8")
    A(f"s_add_u32 s52, s52, {CNT_OFF}")
    A("v_lshlrev_b32 v2, 4, v0")
    A("v_lshrrev_b32 v3, 4, v0")
    A("v_bfe_u32 v4, v0, 2, 2")
    A("v_and_b32 v5, 3, v0")
    A("s_waitcnt lgkmcnt(0)")
    if stamps: A("s_mov_b32 s85, s92")
    A("s_barrier                                ; A")
    A("s_cmp_ge_u32 s44, 4")
    A("s_cbranch_scc1 L_helper")
    C("---------------- stream waves ----------------")
    RING = 64
    def R(n, lo=0, cnt=4): return f"v[{RING+4*n+lo}:{RING+4*n+lo+cnt-1}]"
    QV, DB, AS, AC1, AC2 = 12, 16, 32, 40, 44
    X, T0, T1, PL, PH, MRUN, LRUN, SC, TK = 48, 49, 50, 51, 52, 54, 55, 56, 57
    STEP = 65536
    A("v_lshlrev_b32 v1, 6, v3")
    A("v_lshl_add_u32 v1, v4, 8, v1")
    A("v_lshl_add_u32 v1, v5, 4, v1")
    A("s_lshl_b32 s56, s46, 21")
    A("s_lshl2_add_u32 s57, s45, s44")
    A("s_lshl_b32 s57, s57, 12")
    A("s_add_u32 s48, s56, s57")
    srd(32, 6, "0x8000000")
    srd(36, 8, "0x8000000")
    A("s_cmp_eq_u32 s43, 0")
    A("s_cbranch_scc1 L_go")
    def ld(slot, p, soff):
        if p < 4: A(f"buffer_load_dwordx4 {R(slot)}, v1, s[32:35], {soff} offen offset:{p*1024} nt")
        else:     A(f"buffer_load_dwordx4 {R(slot)}, v2, s[36:39], {soff} offen offset:{(p-4)*1024} nt")
    NT = NI0 + NL
    def fill(FF):
        for n in range(8 * NT):
            if n >= 8 * NI0 and n % 4 == 0: A(f"s_add_u32 m0, s62, {(n - 8*NI0) * 1024}")
            if n >= FF: A(f"s_waitcnt vmcnt({FF-1})")
            p = n % 8
            if n < 8 * NI0: ld(n, p, "s48")
            elif p < 4: A(f"buffer_load_dwordx4 v1, s[32:35], s48 offen offset:{p*1024} nt lds")
            else:       A(f"buffer_load_dwordx4 v2, s[36:39], s48 offen offset:{(p-4)*1024} nt lds")
            if n % 8 == 7: A(f"s_add_u32 s48, s48, {STEP}")
            if n == int(8 * NP) - 1:
                A("v_mov_b32 v10, 1")
                A(f"ds_write_b32 v9, v10 offset:{L_CTL+8}")
            if n == FF - 1:
                srd(28, 18, "0x20000000")
                A(f"s_mov_b32 s59, {f32(math.log2(math.e))}")
                A(f"s_mov_b32 s57, {f32(128 ** -0.5)}")
                A(f"v_mov_b32 v{MRUN}, 0xff7fffff")
                A(f"v_mov_b32 v{LRUN}, 0")
                for i in range(8): A(f"v_mov_b32 v{AC1+i}, 0")
                for i in range(8): A(f"v_mov_b32 v{AS+i}, 0")
                A(f"s_mul_i32 s62, s44, {NL*8192}")
                A(f"s_add_u32 s62, s62, {L_BUF}")
                A("v_add_u32 v6, s62, v2")
                if DP:
                    A("s_lshl_b32 s55, s24, 14")
                    A("s_add_u32 s55, s55, s56")
                    A(f"s_add_u32 s55, s55, {(S - DP) * 65536}")
                C("addresses for the merge at the end")
                A("s_mul_i32 s58, s44, 2560")
                A("v_add_u32 v60, s58, v2")
                A("v_lshlrev_b32 v61, 3, v0")
                A("v_add_u32 v61, s58, v61                  ; own (m, l)")
                A("v_lshlrev_b32 v62, 8, v4")
                A("v_lshl_add_u32 v62, v5, 6, v62")
                A("v_lshl_add_u32 v62, v3, 4, v62")
                if split2:
                    A("s_lshl_b32 s58, s44, 2")
                    A("v_add_u32 v62, s58, v62")
                A("v_lshlrev_b32 v63, 3, v3")
                A("v_and_b32 v59, 15, v0")
                A("v_lshlrev_b32 v59, 4, v59")
                A("v_and_b32 v11, 1, v3")
                A("v_lshl_add_u32 v59, v11, 9, v59")
                A("v_lshrrev_b32 v11, 1, v3")
                A("v_lshl_add_u32 v59, v11, 13, v59")
                A("s_lshr_b32 s86, s47, 3"); A("s_lshl_b32 s86, s86, 14")
                A("s_and_b32 s87, s47, 7"); A("s_lshl_b32 s87, s87, 10"); A("s_add_u32 s86, s86, s87")
                A(f"s_add_u32 s86, s86, {OG_OFF}")
                if split2:
                    A("s_lshl_b32 s87, s44, 7"); A("s_add_u32 s86, s86, s87")
    ldsspin("L_go0", L_CTL, 4)
    if F0p:
        fill(F0p)
        A(f"s_waitcnt vmcnt({F0})")
        A("s_branch L_filled")
    LAB("L_go")
    fill(F0)
    LAB("L_filled")
    STAMP(0)
    A("s_barrier")
    A(f"ds_read_b128 v[{QV}:{QV+3}], v2 offset:{L_Q}")
    A(f"ds_read_b64 v[10:11], v9 offset:{L_CTL+16}")
    if pace: A(f"ds_read_b32 v8, v9 offset:{L_CTL+24}")
    A("s_waitcnt lgkmcnt(0)")
    if pace: A("v_readfirstlane_b32 s63, v8")
    A("v_readfirstlane_b32 s89, v10             ; tag")
    A("v_readfirstlane_b32 s91, v11")
    A("v_xor_b32 v59, v11, v59")
    STAMP(1)
    uid = [0]
    def lreduce():
        A("s_nop 0")
        A(f"v_add_f32_dpp v{LRUN}, v{LRUN}, v{LRUN} row_ror:4 {FULL}")
        A("s_nop 1")
        A(f"v_add_f32_dpp v{LRUN}, v{LRUN}, v{LRUN} row_ror:8 {FULL}")
        A(f"v_mov_b32 v{T1}, v{LRUN}"); A("s_nop 1")
        A(f"v_permlane16_swap_b32 v{LRUN}, v{T1}"); A(f"v_add_f32 v{LRUN}, v{LRUN}, v{T1}")
        A(f"v_mov_b32 v{T1}, v{LRUN}"); A("s_nop 1")
        A(f"v_permlane32_swap_b32 v{LRUN}, v{T1}"); A(f"v_add_f32 v{LRUN}, v{LRUN}, v{T1}")
        A(f"ds_write_b64 v61, v[{MRUN}:{LRUN}] offset:{L_OC+2048}")
    def item(base, waits, loads, last=False):
        u = uid[0]; uid[0] += 1
        def dpp3(t):
            d = DB + 4 * t
            var = f"row_mask:0xf bank_mask:{1<<t:#x}"
            A(f"v_add_f32_dpp v{X}, v{d+(t+1)%4}, v{d+t} row_ror:12 {var}")
            A(f"v_add_f32_dpp v{X}, v{d+(t+2)%4}, v{X} row_ror:8 {var}")
            A(f"v_add_f32_dpp v{X}, v{d+(t+3)%4}, v{X} row_ror:4 {var}")
        for p in range(4):
            w = waits(p)
            if w is not None: A(f"s_waitcnt vmcnt({w})")
            d = DB + 4 * p
            A(f"v_mfma_f32_16x16x32_bf16 v[{d}:{d+3}], {R(base+p)}, v[{QV}:{QV+3}], 0")
            loads(p)
        A("s_nop 4")
        dpp3(0); dpp3(1); dpp3(2); dpp3(3)
        A(f"v_cvt_pk_bf16_f32 v{X}, 0, v{X}")
        A(f"v_mul_f32 v{X}, s57, v{X}")
        A(f"v_cvt_pk_bf16_f32 v{X}, 0, v{X}")
        A("s_nop 1")
        A(f"v_max_f32_dpp v{T0}, v{X}, v{X} row_ror:4 {FULL}")
        A("s_nop 1")
        A(f"v_max_f32_dpp v{T0}, v{T0}, v{T0} row_ror:8 {FULL}")
        A(f"v_mov_b32 v{T1}, v{T0}"); A("s_nop 1")
        A(f"v_permlane16_swap_b32 v{T0}, v{T1}"); A(f"v_max_f32 v{T0}, v{T0}, v{T1}")
        A(f"v_mov_b32 v{T1}, v{T0}"); A("s_nop 1")
        A(f"v_permlane32_swap_b32 v{T0}, v{T1}"); A(f"v_max_f32 v{T0}, v{T0}, v{T1}")
        A(f"v_mul_f32 v{T0}, s59, v{T0}")
        A(f"v_cmp_gt_f32 vcc, v{T0}, v{MRUN}")
        A(f"s_cbranch_vccz L_nors{u}")
        A(f"v_max_f32 v{T0}, v{T0}, v{MRUN}")
        A(f"v_sub_f32 v{SC}, v{MRUN}, v{T0}")
        A(f"v_exp_f32 v{SC}, v{SC}")
        A(f"v_mov_b32 v{MRUN}, v{T0}")
        A(f"v_mul_f32 v{LRUN}, v{LRUN}, v{SC}")
        for i in range(8): A(f"v_mul_f32 v{AC1+i}, v{AC1+i}, v{SC}")
        LAB(f"L_nors{u}")
        A(f"v_fma_f32 v{X}, v{X}, s59, -v{MRUN}")
        A(f"v_exp_f32 v{X}, v{X}")
        A("s_nop 0")
        A(f"v_cvt_pk_bf16_f32 v{PL}, v{X}, 0")
        A(f"v_cvt_pk_bf16_f32 v{PH}, 0, v{X}")
        A(f"v_add_f32 v{LRUN}, v{LRUN}, v{X}")
        def ab(t):
            a = AS + 2 * t
            for jb in range(4):
                src = PL if jb % 2 == 0 else PH
                rot = (4 * (jb - t)) % 16
                ctl = f"row_ror:{rot}" if rot else "quad_perm:[0,1,2,3]"
                A(f"v_mov_b32_dpp v{a + jb//2}, v{src} {ctl} row_mask:0xf bank_mask:{1<<jb:#x}")
        ab(0); ab(1)
        for t in range(4):
            p = 4 + t
            if last and early and t == 3: lreduce()
            w = waits(p)
            if w is not None: A(f"s_waitcnt vmcnt({w})")
            a = AS + 2 * t
            A(f"v_mfma_f32_16x16x16_bf16 v[{AC1}:{AC1+3}], {R(base+p,0,2)}, v[{a}:{a+1}], v[{AC1}:{AC1+3}]")
            A(f"v_mfma_f32_16x16x16_bf16 v[{AC2}:{AC2+3}], {R(base+p,2,2)}, v[{a}:{a+1}], v[{AC2}:{AC2+3}]")
            loads(p)
            if t + 2 < 4: ab(t + 2)
    C("catch-up over the buffered items")
    nre = [0]
    def rel(base):
        def f(p):
            ld(base + p, p, "s48"); nre[0] += 1
            if p == 7 and base == 0 and nre[0] == 8: A(f"s_add_u32 s48, s48, {STEP}")
        return f
    def wt(i):
        def f(p):
            rest = 8 * NT - 1 - (8 * i + p)
            return rest + nre[0] if rest < F0 else None
        return f
    for i in range(NI0):
        lo = rel(8 * i) if i < 2 else (lambda p: None)
        item(8 * i, wt(i), lo)
        j = i - 2
        if i >= 2 and j < NL:
            rest = 8 * NT - 1 - (8 * (NI0 + j) + 7)
            if rest < F0 and j < NL - 1: A(f"s_waitcnt vmcnt({rest + nre[0]})")
            if j < NL - 1 or rest >= F0:
                for p in range(8): A(f"ds_read_b128 {R(8*i+p)}, v6 offset:{j*8192 + p*1024}")
    for j in range(NL):
        g = j + 2
        if j == NL - 1:
            A(f"s_waitcnt vmcnt({nre[0]})")
            for p in range(8): A(f"ds_read_b128 {R(8*g+p)}, v6 offset:{j*8192 + p*1024}")
        A("s_waitcnt lgkmcnt(0)")
        item(8 * g, lambda p: None, lambda p: None)
    nxt = NT + 2
    if F1:
        npair = (S - 2 - nxt) // 2
        A(f"s_mov_b32 s60, {npair}")
        if DP:
            assert DP % 2 == 0
            A(f"s_mul_i32 s58, s43, {DP // 2}")
            A("s_sub_u32 s60, s60, s58")
        def pairloop(lab, F):
            LAB(lab)
            A(f"s_add_u32 s48, s48, {STEP}")
            item(0, lambda p: F - 1, lambda p: ld(p, p, "s48"))
            A(f"s_add_u32 s48, s48, {STEP}")
            item(8, lambda p: F - 1, lambda p: ld(8 + p, p, "s48"))
            A("s_sub_u32 s60, s60, 1")
            A("s_cmp_lg_u32 s60, 0")
            A(f"s_cbranch_scc1 {lab}")
        if pace:
            tau, t0, thr, Fs = pace
            C("Bandwidth share control: a wave's share of HBM bandwidth follows the number of loads it keeps in flight.")
            C("Each pair of items picks its prefetch depth from how far the wave is behind or ahead of the common")
            C("schedule, so that all CUs reach the end of their fixed items together (no waiting, only the depth changes).")
            A(f"s_add_u32 s63, s63, {t0 + tau * nxt // 2}")
            LAB("L_pace")
            A("s_memrealtime s[64:65]")
            A("s_waitcnt lgkmcnt(0)")
            A("s_sub_u32 s64, s64, s63")
            A(f"s_add_u32 s63, s63, {tau}")
            ths = thr if isinstance(thr, (list, tuple)) else (-thr, thr)
            assert len(ths) == len(Fs) - 1
            for lv, th in enumerate(ths):
                A(f"s_cmp_lt_i32 s64, {th}")
                A(f"s_cbranch_scc1 L_p{lv}")
            order = [len(Fs) - 1] + list(range(len(Fs) - 1))
            for idx, lv in enumerate(order):
                F = Fs[lv]
                LAB(f"L_p{lv}")
                A(f"s_add_u32 s48, s48, {STEP}")
                item(0, lambda p: F - 1, lambda p: ld(p, p, "s48"))
                A(f"s_add_u32 s48, s48, {STEP}")
                item(8, lambda p: F - 1, lambda p: ld(8 + p, p, "s48"))
                A("s_sub_u32 s60, s60, 1")
                A("s_cmp_lg_u32 s60, 0")
                A("s_cbranch_scc1 L_pace")
                if idx != len(order) - 1: A("s_branch L_pairx")
        else:
            if F1p:
                if fsel == 'prod': A("s_cmp_eq_u32 s43, 0")
                elif fsel == 'odd': A("s_cmp_eq_u32 s20, 0")
                else: A("s_or_b32 s58, s43, s20"); A("s_cmp_eq_u32 s58, 0")
                A("s_cbranch_scc1 L_pair")
                pairloop("L_pairp", F1p)
                A("s_branch L_pairx")
            pairloop("L_pair", F1)
        LAB("L_pairx")
        nxt += 2 * npair
    A(f"s_add_u32 s48, s48, {STEP}")
    item(0, lambda p: (F1 - 1 if F1 else 15), lambda p: ld(p, p, "s48"))
    item(8, lambda p: 15 - p, lambda p: None)
    A(f"s_mov_b32 s60, {nxt}")
    STAMP(2)
    C("steady loop: slots 0..7 hold item s60; fixed items first, then tickets from the page pool")
    LAB("L_loop")
    A("s_add_u32 s60, s60, 1")
    A(f"s_cmp_lt_u32 s60, {S}")
    A("s_cbranch_scc0 L_dyn")
    A(f"s_add_u32 s48, s48, {STEP}")
    A(f"s_cmp_lt_u32 s60, {S-1}")
    A("s_cbranch_scc1 L_body")
    A("s_branch L_claim")
    LAB("L_dyn")
    A("s_waitcnt vmcnt(8)")
    LAB("L_tk")
    A(f"v_readfirstlane_b32 s61, v{TK}")
    A("s_bitcmp1_b32 s61, 0")
    A("s_cbranch_scc0 L_tkwait")
    A(f"s_cmp_lt_u32 s61, {2*(512 - 16*S + 4*DP)}")
    A("s_cbranch_scc0 L_last")
    if DP:
        C("the first tickets are the fixed slots the q producer of the page leaves out")
        A("s_lshr_b32 s58, s61, 3")
        A("s_lshl_b32 s58, s58, 16")
        A("s_bfe_u32 s48, s61, 0x20001")
        A("s_lshl_b32 s48, s48, 12")
        A("s_add_u32 s48, s48, s58")
        A("s_add_u32 s48, s48, s55")
        A(f"s_cmp_lt_u32 s61, {8*DP}")
        A("s_cbranch_scc1 L_claim")
    A(f"s_add_u32 s61, s61, {32*S - 1 - 8*DP}")
    A("s_lshl_b32 s61, s61, 11")
    A("s_add_u32 s48, s56, s61")
    LAB("L_claim")
    A(f"v_mov_b32 v{TK}, 2")
    A("s_mov_b64 exec, 1")
    A(f"buffer_atomic_add v{TK}, v9, s[28:31], s52 offen sc0 sc1")
    A("s_mov_b64 exec, -1")
    LAB("L_body")
    item(0, lambda p: 7, lambda p: ld(p, p, "s48"))
    A("s_branch L_loop")
    LAB("L_last")
    STAMP(3)
    if stamps: A("s_mov_b32 s81, s61")
    ldsinc(L_CTL + 12)
    item(0, lambda p: 7 - p, lambda p: None, last=True)
    STAMP(4)
    if stamps: A("s_mov_b32 s80, s60")
    if early: A("s_nop 6")
    else: lreduce()
    A(f"ds_write_b128 v60, v[{AC1}:{AC1+3}] offset:{L_OC}")
    A(f"ds_write_b128 v60, v[{AC2}:{AC2+3}] offset:{L_OC+1024}")
    A("s_waitcnt lgkmcnt(0)")
    A("s_barrier                                ; C")
    if split2: A("s_bitcmp1_b32 s44, 0"); A("s_cbranch_scc1 L_s13")
    else: A("s_cmp_eq_u32 s44, 0"); A("s_cbranch_scc0 L_s13")
    C("merge the four waves and publish the partial")
    for w in range(4):
        A(f"ds_read_b64 v[{16+2*w}:{17+2*w}], v63 offset:{L_OC+w*2560+2048}")
    if split2:
        for w in range(4):
            A(f"ds_read_b64 v[{64+4*w}:{65+4*w}], v62 offset:{L_OC+w*2560}")
            A(f"ds_read_b64 v[{66+4*w}:{67+4*w}], v62 offset:{L_OC+w*2560+1024}")
    else:
        for w in range(4):
            A(f"ds_read_b128 v[{64+8*w}:{67+8*w}], v62 offset:{L_OC+w*2560}")
            A(f"ds_read_b128 v[{68+8*w}:{71+8*w}], v62 offset:{L_OC+w*2560+1024}")
    A("s_waitcnt lgkmcnt(8)")
    A("v_max3_f32 v24, v16, v18, v20")
    A("v_max_f32 v24, v24, v22")
    for w in range(4): A(f"v_sub_f32 v{16+2*w}, v{16+2*w}, v24")
    for w in range(4): A(f"v_exp_f32 v{16+2*w}, v{16+2*w}")
    A("s_nop 0")
    A("v_mul_f32 v25, v16, v17")
    A("v_mul_f32 v27, v20, v21")
    A("v_fmac_f32 v25, v18, v19")
    A("v_fmac_f32 v27, v22, v23")
    A("v_add_f32 v25, v25, v27")
    A("v_rcp_f32 v26, v25")
    A("v_log_f32 v42, v25")
    A("s_waitcnt lgkmcnt(0)")
    if split2:
        for i in range(2): A(f"v_pk_mul_f32 v[{64+2*i}:{65+2*i}], v[{64+2*i}:{65+2*i}], v[16:17] op_sel_hi:[1,0]")
        for w in range(1, 4):
            for i in range(2): A(f"v_pk_fma_f32 v[{64+2*i}:{65+2*i}], v[{64+4*w+2*i}:{65+4*w+2*i}], v[{16+2*w}:{17+2*w}], v[{64+2*i}:{65+2*i}] op_sel_hi:[1,0,1]")
        A("v_add_f32 v42, v42, v24")
        for i in range(2): A(f"v_pk_mul_f32 v[{64+2*i}:{65+2*i}], v[{64+2*i}:{65+2*i}], v[26:27] op_sel_hi:[1,0]")
        A("v_xor_b32 v29, s89, v42")
        A("v_cvt_pk_bf16_f32 v40, v64, v66")
        A("v_cvt_pk_bf16_f32 v41, v65, v67")
        A("v_bitop3_b32 v43, v40, v41, v29 bitop3:0x96")
        A("buffer_store_dwordx4 v[40:43], v59, s[28:31], s86 offen sc1")
    else:
        for i in range(4): A(f"v_pk_mul_f32 v[{64+2*i}:{65+2*i}], v[{64+2*i}:{65+2*i}], v[16:17] op_sel_hi:[1,0]")
        for w in range(1, 4):
            for i in range(4): A(f"v_pk_fma_f32 v[{64+2*i}:{65+2*i}], v[{64+8*w+2*i}:{65+8*w+2*i}], v[{16+2*w}:{17+2*w}], v[{64+2*i}:{65+2*i}] op_sel_hi:[1,0,1]")
        A("v_add_f32 v42, v42, v24")
        for i in range(4): A(f"v_pk_mul_f32 v[{64+2*i}:{65+2*i}], v[{64+2*i}:{65+2*i}], v[26:27] op_sel_hi:[1,0]")
        A("v_mov_b32 v46, v42")
        A("v_xor_b32 v29, s89, v42")
        A("v_cvt_pk_bf16_f32 v40, v64, v68")
        A("v_cvt_pk_bf16_f32 v41, v65, v69")
        A("v_cvt_pk_bf16_f32 v44, v66, v70")
        A("v_cvt_pk_bf16_f32 v45, v67, v71")
        A("v_bitop3_b32 v43, v40, v41, v29 bitop3:0x96")
        A("v_bitop3_b32 v47, v44, v45, v29 bitop3:0x96")
        A("buffer_store_dwordx4 v[40:43], v59, s[28:31], s86 offen sc1")
        A("buffer_store_dwordx4 v[44:47], v59, s[28:31], s86 offen offset:256 sc1")
    if d2: A("s_waitcnt vmcnt(0)")
    A("s_barrier                                ; D")
    STAMP(5)
    if stamps:
        A("s_barrier")
        if not tdel: A("s_barrier")
    A("s_branch L_fin")
    LAB("L_tkwait")
    A("s_waitcnt vmcnt(0)")
    A(f"v_or_b32 v{TK}, 1, v{TK}")
    A("s_nop 0")
    A("s_branch L_tk")
    LAB("L_s13")
    A("s_cmp_eq_u32 s44, 1")
    if stamps:
        A("s_cbranch_scc1 L_hop2")
        A("s_barrier"); A("s_barrier")
        if not tdel: A("s_barrier")
        A("s_branch L_fin")
        LAB("L_hop2")
    else:
        A("s_cbranch_scc0 L_fin")
    C("wave 1: sum the 32 contributions of 2 rows x 8 columns and write them out")
    srd(40, 14, "0x2000")
    A("s_and_b32 s88, s2, 7"); A("s_bfe_u32 s87, s2, 0x30003"); A("s_lshl3_add_u32 s88, s88, s87")
    A("s_lshr_b32 s87, s2, 6")
    A("s_lshl_b32 s86, s87, 6")
    A("s_add_u32 s86, s86, s88")
    A("s_bfe_u32 s64, s86, 0x10001"); A("s_bfe_u32 s65, s86, 0x10005"); A("s_andn2_b32 s86, s86, 0x22")
    A("s_lshl_b32 s64, s64, 5"); A("s_add_u32 s86, s86, s64"); A("s_lshl1_add_u32 s86, s65, s86")
    A("s_lshl_b32 s86, s86, 12")
    A("s_xor_b32 s86, s86, s91")
    A(f"s_add_u32 s86, s86, {Y_OFF}")
    A("s_lshl_b32 s87, s87, 11")
    A("s_lshl4_add_u32 s87, s88, s87")
    A("v_lshlrev_b32 v10, 1, v0")
    A("s_mov_b32 s88, 0")
    if pre2:
        for i in range(4):
            A(f"buffer_load_dwordx4 v[{16+4*i}:{19+4*i}], v2, s[28:31], s86 offen offset:{1024*i} sc1")
    A("s_barrier                                ; D")
    A("s_barrier")
    A("s_cmp_eq_u32 s2, 0")
    A("s_cbranch_scc0 L_noep")
    A("s_mov_b64 exec, 1")
    A("v_mov_b32 v17, s89")
    A("buffer_store_dword v17, v9, s[28:31], 0 offen sc1")
    A("s_mov_b64 exec, -1")
    LAB("L_noep")
    if tdel: A(f"s_sleep {tdel}")
    else: A("s_barrier                                ; F")
    LAB("L_h2poll")
    for i in range(4):
        A(f"buffer_load_dwordx4 v[{16+4*i}:{19+4*i}], v2, s[28:31], s86 offen offset:{1024*i} sc1")
    for i in range(4):
        A(f"s_waitcnt vmcnt({3-i})")
        r = 16 + 4 * i
        A(f"v_bitop3_b32 v{32+2*i}, v{r}, v{r+2}, s89 bitop3:0x96")
        A(f"v_bitop3_b32 v{33+2*i}, v{r+1}, v{r+3}, s89 bitop3:0x96")
        if i == 1: A("v_or3_b32 v32, v32, v33, v34")
        if i == 2: A("v_or3_b32 v35, v35, v36, v37")
    A("v_or3_b32 v32, v32, v38, v39")
    A("v_or_b32 v32, v32, v35")
    A("v_cmp_ne_u32 vcc, 0, v32")
    A("s_and_b64 exec, exec, vcc")
    A("s_cbranch_execz L_h2ok")
    A("s_add_u32 s88, s88, 1")
    A(f"s_cmp_gt_u32 s88, {spin}")
    A("s_cbranch_scc0 L_h2poll")
    LAB("L_h2ok")
    A("s_mov_b64 exec, -1")
    STAMP(6)
    if stamps: A("s_mov_b32 s83, s88")
    A("v_pk_add_f32 v[16:17], v[16:17], v[20:21]")
    A("v_pk_add_f32 v[24:25], v[24:25], v[28:29]")
    A("v_pk_add_f32 v[16:17], v[16:17], v[24:25]")
    A("s_nop 1")
    A(f"v_add_f32_dpp v16, v16, v16 row_ror:8 {FULL}")
    A(f"v_add_f32_dpp v17, v17, v17 row_ror:8 {FULL}")
    A("s_nop 1")
    C("rows 0/1 of v16 and v17 side by side: v16 = [a0, b0, a2, b2], v17 = [a1, b1, a3, b3]")
    A("v_permlane16_swap_b32 v16, v17")
    A("v_add_f32 v16, v16, v17")
    A("v_mov_b32 v18, v16"); A("s_nop 1")
    A("v_permlane32_swap_b32 v16, v18")
    A("v_add_f32 v16, v16, v18")
    A("v_cvt_pk_bf16_f32 v16, v16, v16")
    if padto:
        LAB("L_pad")
        A("s_memrealtime s[66:67]"); A("s_waitcnt lgkmcnt(0)"); A("s_sub_u32 s66, s66, s92")
        A(f"s_cmp_lt_u32 s66, {padto}"); A("s_cbranch_scc1 L_pad")
    A("s_mov_b32 exec_lo, 0x00ff00ff"); A("s_mov_b32 exec_hi, 0")
    A("buffer_store_short v16, v11, s[40:43], s87 offen")
    A("s_mov_b64 exec, -1")
    A("s_branch L_fin")

    C("---------------- helper waves ----------------")
    LAB("L_helper")
    A("s_setprio 3")
    A("s_load_dword s89, s[18:19], 0")
    A("s_sub_u32 s56, s44, 4")
    srd(28, 18, "0x20000000")
    A("s_and_b32 s40, s46, 7")
    A("s_lshr_b32 s41, s46, 3")
    A("s_cmp_eq_u32 s43, 0")
    A("s_cbranch_scc1 L_noprod")
    C("q producer: 64 columns for all batches; this wave: wq rows [128hw, +128)")
    srd(36, 10, "0x400000")
    A("s_lshl3_add_u32 s48, s40, s41")
    A("s_lshl_b32 s49, s48, 7")
    A("s_lshl_b32 s50, s56, 20")
    A("s_add_u32 s49, s49, s50")
    A("v_lshrrev_b32 v6, 3, v0")
    A("v_and_b32 v7, 7, v0")
    A("v_lshlrev_b32 v8, 13, v6")
    A("v_lshl_add_u32 v8, v7, 4, v8")
    A("v_and_b32 v11, 16, v0")
    A("v_lshlrev_b32 v11, 1, v11")
    A("v_xor_b32 v8, v8, v11")
    A("v_xor_b32 v11, 64, v8")
    A("s_lshl_b32 s50, s56, 14")
    A(f"s_add_u32 s50, s50, {L_STG}")
    for i in range(16):
        A(f"s_add_u32 m0, s50, {i*1024}")
        if i: A(f"s_add_u32 s49, s49, {8*8192}")
        else: A("s_nop 0")
        A(f"buffer_load_dwordx4 v{11 if i % 2 else 8}, s[36:39], s49 offen nt lds")
    srd(32, 4, "0x2000")
    A("v_lshlrev_b32 v11, 10, v7")
    A("v_lshl_add_u32 v11, v3, 4, v11")
    A("s_lshl_b32 s51, s56, 8")
    A("s_mov_b32 exec_lo, 0x00ff00ff"); A("s_mov_b32 exec_hi, 0x00ff00ff")
    for s in range(4):
        A(f"buffer_load_dwordx4 v[{96+4*s}:{99+4*s}], v11, s[32:35], s51 offen offset:{64*s}")
    A("s_mov_b64 exec, 1")
    A("v_mov_b32 v10, 1")
    A("buffer_store_dword v10, v9, s[28:31], s52 offen sc1")
    ldsinc(L_CTL)
    STAMP(3)
    A("v_lshl_add_u32 v12, v3, 3, v4")
    A("v_lshlrev_b32 v12, 7, v12")
    A("v_lshl_add_u32 v12, v5, 3, v12")
    A("v_add_u32 v12, s50, v12")
    A("v_bfe_u32 v17, v0, 3, 2")
    A("v_lshl_add_u32 v112, v17, 5, v12")
    for ct in range(1, 4): A(f"v_xor_b32 v{112+ct}, {32*ct}, v112")
    A("v_add_u32 v13, s50, v2")
    A("s_lshl_b32 s51, s56, 10")
    A("v_bfe_u32 v16, v0, 2, 3")
    A("v_lshlrev_b32 v14, 8, v5")
    A("v_lshl_add_u32 v14, v16, 4, v14")
    A("v_add_u32 v14, s51, v14")
    A("v_bfe_u32 v15, v0, 3, 2")
    A("v_lshlrev_b32 v15, 15, v15")
    A("v_lshl_add_u32 v15, v7, 4, v15")
    A("s_lshl2_add_u32 s48, s48, s56")
    A("s_lshl_b32 s48, s48, 7")
    A(f"s_add_u32 s48, s48, {QG_OFF}")
    A("s_waitcnt vmcnt(0) lgkmcnt(0)")
    STAMP(0)
    for ks in range(4):
        for ct in range(4):
            r = 128 + 16 * ks + 4 * ct
            A(f"ds_read_b64_tr_b16 v[{r}:{r+1}], v{112+ct} offset:{ks*4096}")
            A(f"ds_read_b64_tr_b16 v[{r+2}:{r+3}], v{112+ct} offset:{ks*4096 + 512}")
    for ks in range(4):
        for ct in range(4):
            rem = 2 * (15 - (4 * ks + ct))
            A(f"s_waitcnt lgkmcnt({min(rem, 15)})")
            r = 128 + 16 * ks + 4 * ct
            c = "0" if ks == 0 else f"v[{16+4*ct}:{19+4*ct}]"
            A(f"v_mfma_f32_16x16x32_bf16 v[{16+4*ct}:{19+4*ct}], v[{r}:{r+3}], v[{96+4*ks}:{99+4*ks}], {c}")
    A("s_nop 4")
    for ct in range(4):
        if ct: A("s_nop 0")
        A(f"ds_write_b128 v13, v[{16+4*ct}:{19+4*ct}] offset:{1024*ct}")
    A("s_waitcnt lgkmcnt(0)")
    ldsinc(L_CTL + 4)
    ldsspin("L_red", L_CTL + 4, 4)
    for w in range(4):
        A(f"ds_read_b128 v[{16+4*w}:{19+4*w}], v14 offset:{L_STG + 16384*w}")
    A("s_add_u32 s90, s89, 0x9e3779b1")
    A("s_or_b32 s90, s90, 1")
    A("s_waitcnt lgkmcnt(0)")
    for i in range(4):
        A(f"v_add_f32 v{16+i}, v{16+i}, v{20+i}")
        A(f"v_add_f32 v{24+i}, v{24+i}, v{28+i}")
    for i in range(4): A(f"v_add_f32 v{16+i}, v{16+i}, v{24+i}")
    A("v_cvt_pk_bf16_f32 v20, v16, v17")
    A("v_cvt_pk_bf16_f32 v21, v18, v19")
    A("v_xor_b32 v22, s90, v20")
    A("v_xor_b32 v23, s90, v21")
    A("s_mov_b32 exec_hi, 0")
    A("buffer_store_dwordx4 v[20:23], v15, s[28:31], s48 offen sc1")
    A("s_mov_b64 exec, -1")
    STAMP(1)
    LAB("L_noprod")
    A("s_waitcnt lgkmcnt(0)")
    A("s_add_u32 s89, s89, 0x9e3779b1")
    A("s_or_b32 s89, s89, 1")
    A("s_cmp_eq_u32 s56, 0")
    A("s_cbranch_scc1 L_h0")
    if probe:
        A("s_cmp_eq_u32 s56, 1")
        A("s_cbranch_scc1 L_h1")
        C("wave 7 of workgroup 1: which 8 KiB half of d_ws answers this die first (placement of the hand-off units, speed only)")
        A("s_lshl2_add_u32 s58, s2, s56")
        A("s_cmp_eq_u32 s58, 7")
        A("s_cbranch_scc0 L_hwaitB")
        A("s_mov_b32 s60, 0"); A("s_mov_b32 s61, 0")
        for t in range(2 * nprb):
            first = t % 2
            A(f"s_load_dword s50, s[18:19], {PRB_OFF + first*8192 + t*256}")
            A(f"s_load_dword s51, s[18:19], {PRB_OFF + (1-first)*8192 + t*256}")
            A("s_waitcnt lgkmcnt(1)")
            A("s_memtime s[62:63]")
            A("s_waitcnt lgkmcnt(0)")
            A("s_memtime s[64:65]")
            A("s_waitcnt lgkmcnt(0)")
            A("s_sub_u32 s54, s64, s62")
            A("s_min_u32 s54, s54, 400")
            A(f"s_add_u32 s{60+first}, s{60+first}, s54")
        if stamps: A("s_mov_b32 s80, s60"); A("s_mov_b32 s81, s61")
        A("s_cmp_gt_u32 s61, s60")
        A("s_cselect_b32 s60, 0x2000, 0")
        if pace:
            A("s_andn2_b32 s61, s92, 1"); A("s_lshr_b32 s60, s60, 13"); A("s_or_b32 s60, s60, s61")
        A("s_xor_b32 s61, s60, s89")
        A("v_mov_b32 v16, s60"); A("v_mov_b32 v17, s61")
        A("s_mov_b64 exec, 1")
        A(f"buffer_store_dwordx2 v[16:17], v9, s[28:31], 0 offen offset:{CFG_OFF} sc1")
        A("s_mov_b64 exec, -1")
        A("s_branch L_hwaitB")
        LAB("L_h1")
        ldsspin("L_prog1", L_CTL + 8, 1, sleep=2)
        A("s_mov_b32 s54, 0")
        A("s_mov_b64 exec, 1")
        LAB("L_cpoll")
        A(f"buffer_load_dwordx2 v[16:17], v9, s[28:31], 0 offen offset:{CFG_OFF} sc1")
        A("s_waitcnt vmcnt(0)")
        A("v_xor_b32 v18, v16, v17")
        A("v_cmp_ne_u32 vcc, s89, v18")
        A("s_cbranch_vccz L_cok")
        A("s_add_u32 s54, s54, 1")
        A(f"s_cmp_gt_u32 s54, {spin}")
        A("s_cbranch_scc0 L_cpoll")
        LAB("L_cok")
        if pace:
            A(f"ds_write_b32 v9, v16 offset:{L_CTL+24}")
            A("v_lshlrev_b32 v16, 13, v16")
        A("v_and_b32 v16, 0x2000, v16")
        A(f"ds_write_b32 v9, v16 offset:{L_CTL+20}")
        A("s_mov_b64 exec, -1")
        A("s_waitcnt lgkmcnt(0)")
    A("s_branch L_hwaitB")
    LAB("L_h0")
    C("wave 4: fetch q of the page")
    A("v_lshlrev_b32 v14, 10, v5")
    A("v_lshl_add_u32 v14, v3, 8, v14")
    A("v_lshrrev_b32 v15, 1, v4")
    A("v_lshl_add_u32 v14, v15, 7, v14")
    A("v_and_b32 v15, 1, v4")
    A("v_lshl_add_u32 v14, v15, 5, v14")
    A("s_lshr_b32 s53, s41, 1")
    A("s_lshl_b32 s53, s53, 15")
    A("s_lshl_b32 s54, s40, 12")
    A("s_add_u32 s53, s53, s54")
    A("s_and_b32 s54, s41, 1")
    A("s_lshl_b32 s54, s54, 6")
    A("s_add_u32 s53, s53, s54")
    A(f"s_add_u32 s53, s53, {QG_OFF}")
    A("v_mov_b32 v11, s89")
    A(f"ds_write_b32 v9, v11 offset:{L_CTL+16}")
    if not probe:
        A(f"v_mov_b32 v11, {cfix << 13}")
        A(f"ds_write_b32 v9, v11 offset:{L_CTL+20}")
    ldsspin("L_prog", L_CTL + 8, 1, sleep=2)
    A("s_mov_b32 s54, 0")
    LAB("L_qpoll")
    A("buffer_load_dwordx4 v[24:27], v14, s[28:31], s53 offen sc1")
    A("buffer_load_dwordx4 v[28:31], v14, s[28:31], s53 offen offset:16 sc1")
    A("s_waitcnt vmcnt(0)")
    A("v_bitop3_b32 v32, v24, v26, s89 bitop3:0x96")
    A("v_bitop3_b32 v33, v25, v27, s89 bitop3:0x96")
    A("v_bitop3_b32 v34, v28, v30, s89 bitop3:0x96")
    A("v_bitop3_b32 v35, v29, v31, s89 bitop3:0x96")
    A("v_or3_b32 v36, v32, v33, v34")
    A("v_or_b32 v36, v36, v35")
    A("v_cmp_ne_u32 vcc, 0, v36")
    A("s_and_b64 exec, exec, vcc")
    A("s_cbranch_execz L_qok")
    A("s_add_u32 s54, s54, 1")
    A(f"s_cmp_gt_u32 s54, {spin}")
    A("s_cbranch_scc0 L_qpoll")
    LAB("L_qok")
    A("s_mov_b64 exec, -1")
    A(f"ds_write_b64 v2, v[24:25] offset:{L_Q}")
    A(f"ds_write_b64 v2, v[28:29] offset:{L_Q+8}")
    if stamps: A("s_mov_b32 s82, s54")
    A("s_waitcnt lgkmcnt(0)")
    STAMP(2)
    LAB("L_hwaitB")
    A("s_barrier                                ; B")
    A("s_setprio 0")
    A(f"ds_read_b32 v17, v9 offset:{L_CTL+20}")
    C("output projection role: 16 rows of one head of every kv group (chunk G), 64 columns c8;")
    C("this wave merges batches 2hw, 2hw+1 and multiplies the 16-column tile hw")
    srd(36, 12, "0x400000")
    A("s_and_b32 s59, s2, 7"); A("s_bfe_u32 s60, s2, 0x20003"); A("s_lshl2_add_u32 s59, s59, s60   ; G")
    A("s_lshr_b32 s60, s2, 5                    ; c8")
    A("s_lshr_b32 s48, s59, 3")
    A("s_lshl3_add_u32 s48, s56, s48")
    A("s_lshl_b32 s48, s48, 17")
    A("s_and_b32 s50, s59, 3")
    A("s_lshl_b32 s50, s50, 15")
    A("s_add_u32 s48, s48, s50")
    A("s_bfe_u32 s50, s59, 0x10002")
    A("s_lshl_b32 s50, s50, 14")
    A("s_add_u32 s48, s48, s50")
    A("s_lshl_b32 s50, s60, 7")
    A("s_add_u32 s48, s48, s50")
    A("v_bfe_u32 v6, v0, 3, 1")
    A("v_lshlrev_b32 v6, 11, v6")
    A("v_bfe_u32 v7, v0, 4, 1")
    A("v_lshl_add_u32 v6, v7, 10, v6")
    A("v_bfe_u32 v7, v0, 5, 1")
    A("v_lshl_add_u32 v6, v7, 12, v6")
    A("v_and_b32 v11, 7, v0")
    A("v_lshlrev_b32 v11, 4, v11")
    A("v_lshlrev_b32 v7, 5, v7")
    A("v_xor_b32 v11, v11, v7")
    A("v_add_u32 v7, v6, v11")
    A("v_xor_b32 v6, 64, v7")
    A("s_lshl_b32 s49, s56, 12")
    A(f"s_add_u32 s49, s49, {L_STG}")
    A("v_lshrrev_b32 v8, 1, v3")
    A("v_lshlrev_b32 v8, 4, v8")
    A("v_and_b32 v11, 1, v3")
    A("v_add_u32 v8, v8, v11")
    A("v_lshl_add_u32 v8, v4, 2, v8")
    A("v_lshlrev_b32 v8, 7, v8")
    A("v_lshl_add_u32 v8, v5, 3, v8")
    A("v_xor_b32 v11, s56, v4")
    A("v_lshl_add_u32 v8, v11, 5, v8")
    A("s_waitcnt lgkmcnt(0)")
    A("v_readfirstlane_b32 s91, v17")
    A("v_lshrrev_b32 v11, 5, v0")
    A("v_and_b32 v13, 31, v0")
    A("v_lshlrev_b32 v12, 16, v11")
    A("v_bfe_u32 v16, v0, 3, 2"); A("v_lshl_add_u32 v12, v16, 14, v12")
    A("v_bfe_u32 v16, v0, 2, 1"); A("v_lshl_add_u32 v12, v16, 12, v12")
    A("v_lshl_add_u32 v12, v5, 4, v12")
    A("s_lshl_b32 s53, s56, 17")
    A("s_and_b32 s54, s59, 15"); A("s_lshl_b32 s54, s54, 6"); A("s_add_u32 s53, s53, s54")
    A("s_lshr_b32 s54, s59, 4"); A("s_lshl_b32 s54, s54, 13"); A("s_add_u32 s53, s53, s54")
    A("s_xor_b32 s53, s53, s91")
    A(f"s_add_u32 s53, s53, {OG_OFF}")
    A("s_mul_i32 s51, s56, 544")
    A("v_mul_u32_u24 v11, 272, v11")
    A("v_lshl_add_u32 v13, v13, 3, v11")
    A("v_add_u32 v13, s51, v13")
    A("v_and_b32 v15, 1, v0")
    A("v_lshl_add_u32 v15, v4, 1, v15")
    A("v_mul_u32_u24 v15, 272, v15")
    A("v_lshl_add_u32 v15, v3, 4, v15")
    A("v_bfe_u32 v16, v0, 3, 1")
    A("v_lshl_add_u32 v14, v3, 6, v16")
    A("v_lshlrev_b32 v14, 12, v14")
    A("v_and_b32 v11, 7, v0")
    A("v_lshl_add_u32 v14, v11, 4, v14")
    A("s_lshl2_add_u32 s55, s60, s56")
    A("s_lshl_b32 s64, s55, 1")
    A("s_and_b32 s64, s64, 31")
    A("s_xor_b32 s64, s64, s59")
    A("v_xor_b32 v16, s64, v16")
    A("v_lshl_add_u32 v14, v16, 7, v14")
    A("s_and_b32 s64, s55, 1"); A("s_bfe_u32 s65, s55, 0x10004"); A("s_andn2_b32 s55, s55, 0x11")
    A("s_lshl4_add_u32 s55, s64, s55"); A("s_add_u32 s55, s55, s65")
    A("s_lshl_b32 s55, s55, 13")
    A("s_xor_b32 s55, s55, s91")
    A(f"s_add_u32 s55, s55, {Y_OFF}")
    A("s_mov_b32 s63, 0xffff0000")
    A("s_mov_b32 s61, 0")
    ldsspin("L_wol", L_CTL + 12, 4, sleep=3)
    for i in range(4):
        A(f"s_add_u32 m0, s49, {i*1024}")
        A("s_nop 0")
        A(f"buffer_load_dwordx4 v{6 if i % 2 else 7}, s[36:39], s48 offen nt lds")
        A(f"s_add_u32 s48, s48, {524288 - 8192 if i == 1 else 8192}")
    STAMP(5)
    if hprio: A(f"s_setprio {hprio}")
    A("s_barrier                                ; C")
    if wpre: A("s_waitcnt vmcnt(0)")
    A("s_barrier                                ; D")
    if wpre:
        for f in range(4):
            r = 96 + 4 * f
            A(f"ds_read_b64_tr_b16 v[{r}:{r+1}], v8 offset:{L_STG + 32*f*128}")
            A(f"ds_read_b64_tr_b16 v[{r+2}:{r+3}], v8 offset:{L_STG + (32*f+2)*128}")
    STAMP(6)
    if d1: A(f"s_sleep {d1}")
    LAB("L_h1poll")
    for sp in range(4):
        r = 32 + 4 * sp
        A(f"buffer_load_dwordx4 v[{r}:{r+3}], v12, s[28:31], s53 offen offset:{1024*sp} sc1")
    for sp in range(4):
        r = 32 + 4 * sp
        A(f"s_waitcnt vmcnt({3-sp})")
        A(f"v_bitop3_b32 v{48+sp}, v{r}, v{r+1}, v{r+2} bitop3:0x96")
        A(f"v_bitop3_b32 v{48+sp}, v{48+sp}, v{r+3}, s89 bitop3:0x96")
        if sp == 2: A("v_or3_b32 v48, v48, v49, v50")
    A("v_or_b32 v48, v48, v51")
    A("v_cmp_ne_u32 vcc, 0, v48")
    A("s_and_b64 exec, exec, vcc")
    A("s_cbranch_execz L_h1ok")
    A("s_add_u32 s61, s61, 1")
    A(f"s_cmp_gt_u32 s61, {spin}")
    A("s_cbranch_scc0 L_h1poll")
    LAB("L_h1ok")
    A("s_mov_b64 exec, -1")
    STAMP(7)
    if stamps: A("s_mov_b32 s83, s61")
    A("v_max3_f32 v52, v34, v38, v42")
    A("v_max_f32 v52, v52, v46")
    for sp in range(4): A(f"v_sub_f32 v{48+sp}, v{34+4*sp}, v52")
    for sp in range(4):
        r = 32 + 4 * sp
        A(f"v_exp_f32 v{48+sp}, v{48+sp}")
        A(f"v_and_b32 v{r+2}, s63, v{r}")
        A(f"v_and_b32 v{r+3}, s63, v{r+1}")
        A(f"v_lshlrev_b32 v{r}, 16, v{r}")
        A(f"v_lshlrev_b32 v{r+1}, 16, v{r+1}")
    A("v_add_f32 v52, v48, v49")
    A("v_add_f32 v53, v50, v51")
    A("v_add_f32 v52, v52, v53")
    A("v_rcp_f32 v52, v52")
    for h2 in range(2):
        A(f"v_pk_mul_f32 v[{32+2*h2}:{33+2*h2}], v[{32+2*h2}:{33+2*h2}], v[48:49] op_sel_hi:[1,0]")
    for sp in range(1, 4):
        w = 48 + (sp & ~1)
        sel = "op_sel:[0,1,0] op_sel_hi:[1,1,1]" if sp % 2 else "op_sel_hi:[1,0,1]"
        for h2 in range(2):
            A(f"v_pk_fma_f32 v[{32+2*h2}:{33+2*h2}], v[{32+4*sp+2*h2}:{33+4*sp+2*h2}], v[{w}:{w+1}], v[{32+2*h2}:{33+2*h2}] {sel}")
    for h2 in range(2):
        A(f"v_pk_mul_f32 v[{32+2*h2}:{33+2*h2}], v[{32+2*h2}:{33+2*h2}], v[52:53] op_sel_hi:[1,0]")
    A("v_cvt_pk_bf16_f32 v36, v32, v34")
    A("v_cvt_pk_bf16_f32 v37, v33, v35")
    A(f"ds_write_b64 v13, v[36:37] offset:{L_OI}")
    A("s_waitcnt lgkmcnt(0)")
    A("s_barrier                                ; E")
    for f in range(4):
        r = 96 + 4 * f
        if not wpre:
            A(f"ds_read_b64_tr_b16 v[{r}:{r+1}], v8 offset:{L_STG + 32*f*128}")
            A(f"ds_read_b64_tr_b16 v[{r+2}:{r+3}], v8 offset:{L_STG + (32*f+2)*128}")
        A(f"ds_read_b128 v[{32+4*f}:{35+4*f}], v15 offset:{L_OI + 64*f}")
    for f in range(4):
        A(f"s_waitcnt lgkmcnt({3-f if wpre else 9-3*f})")
        c = "0" if f == 0 else "v[68:71]"
        A(f"v_mfma_f32_16x16x32_bf16 v[68:71], v[{32+4*f}:{35+4*f}], v[{96+4*f}:{99+4*f}], {c}")
    A("s_nop 7")
    A("v_xor_b32 v70, s89, v68"); A("v_xor_b32 v71, s89, v69")
    A("buffer_store_dwordx4 v[68:71], v14, s[28:31], s55 offen sc1")
    if not tdel:
        A("s_waitcnt vmcnt(0)")
        A("s_barrier                                ; F")
    STAMP(8)
    LAB("L_fin")
    if stamps:
        A("s_waitcnt vmcnt(0)")
        STAMP(9)
        A("s_lshl_b32 s48, s2, 3")
        A("s_add_u32 s48, s48, s44")
        A("s_lshl_b32 s48, s48, 6")
        A(f"s_add_u32 s48, s48, {ST_OFF}")
        A("v_mov_b32 v1, 0")
        A("s_mov_b64 exec, 1")
        for q in range(4):
            for i in range(4): A(f"v_mov_b32 v{12+i}, s{70+4*q+i}")
            A(f"buffer_store_dwordx4 v[12:15], v1, s[28:31], s48 offen offset:{16*q}")
            A("s_nop 1")
    LAB("L_end")
    A("s_endpgm")
    nv = max(192, RING + 32 * NI0)
    L.append('.section .rodata,"a"\n.p2align 6')
    L.append(f".amdhsa_kernel {KN}")
    L.append(f"  .amdhsa_next_free_vgpr {nv}\n  .amdhsa_next_free_sgpr 96\n  .amdhsa_accum_offset {nv}")
    L.append("  .amdhsa_group_segment_fixed_size 0\n  .amdhsa_kernarg_size 64\n  .amdhsa_float_denorm_mode_32 3")
    L.append("  .amdhsa_user_sgpr_count 2\n  .amdhsa_user_sgpr_kernarg_segment_ptr 1\n  .amdhsa_system_sgpr_workgroup_id_x 1")
    L.append(".end_amdhsa_kernel")
    txt = "\n".join(L) + "\n"
    txt = txt.replace("  v_lshlrev_b32 v10, 1, v0\n  s_mov_b32 s88, 0\n", "  v_and_b32 v11, 7, v0\n  v_lshlrev_b32 v11, 1, v11\n  v_lshl_add_u32 v11, v3, 10, v11\n  s_mov_b32 s88, 0\n")
    open(name, "w").write(txt)
```

```python
import sys, struct, math
KN = "standalone__gqa_block_cached__sampling_kernel"
HDR = open("standalone__gqa_block_cached__sampling.s.ref").read().split("; Override launch")[0]

CFG_OFF, CNT_OFF, PRB_OFF, QG_OFF, OG_OFF, Y_OFF, ST_OFF = 0x800, 0x1000, 0x8000, 0x10000, 0x80000, 0x100000, 0x800000
L_Q, L_CTL, L_OC, L_STG = 0x0, 0x400, 0x800, 0x3000
L_OI = 0x8000
L_BUF = 0x13000
def f32(x): return struct.unpack("<I", struct.pack("<f", x))[0]
FULL = "row_mask:0xf bank_mask:0xf"

def gen(name, stamps=False, spin=100000, F0=7, NI0=6, S=26, NP=7, NL=2, padto=0, probe=True, cfix=0, split2=False, early=False, nprb=3, tdel=18, d2=False, d1=6, pre2=False, pmode='c', F1=12, F1p=0, fsel='prod', F0p=0, DP=0, wpre=False, hprio=0, notail=False, nowq=False, nowo=False, nocomp=False, skipmax=False, lateA=False, pace=None):
    L = []
    def A(s): L.append("  " + s)
    def C(s): L.append("  ; " + s)
    def LAB(s): L.append(s + ":")
    def STAMP(i):
        if stamps:
            A("s_memrealtime s[66:67]"); A("s_waitcnt lgkmcnt(0)"); A(f"s_mov_b32 s{70+i}, s66")
    def srd(d, lo, size):
        A(f"s_mov_b32 s{d}, s{lo}"); A(f"s_mov_b32 s{d+1}, s{lo+1}")
        A(f"s_mov_b32 s{d+2}, {size}"); A(f"s_mov_b32 s{d+3}, 0x20000")
    def ldsspin(lab, off, val, sleep=0):
        LAB(lab)
        if sleep: A(f"s_sleep {sleep}")
        A(f"ds_read_b32 v10, v9 offset:{off}")
        A("s_waitcnt lgkmcnt(0)")
        A("v_readfirstlane_b32 s58, v10")
        A(f"s_cmp_lt_u32 s58, {val}")
        A(f"s_cbranch_scc1 {lab}")
    def ldsinc(off):
        A("s_mov_b64 exec, 1")
        A("v_mov_b32 v10, 1")
        A(f"ds_add_u32 v9, v10 offset:{off}")
        A("s_mov_b64 exec, -1")
    L.append(HDR.rstrip())
    LDS_BYTES = L_BUF + 4 * NL * 8192
    L.append(f"; @launch grid=(256,1,1) block=(512,1,1) lds={LDS_BYTES}")
    L.append("""; One launch, one workgroup per CU. Waves 0-3 stream K/V (items of 16 keys, online softmax, MFMA for
; Hand-offs go through d_ws as 16-byte units that carry a check word built from a per-launch tag.""")
    L.append('.amdgcn_target "amdgcn-amd-amdhsa--gfx950"\n.text')
    L.append(f".globl {KN}\n.p2align 8\n.type {KN},@function\n{KN}:")
    A("s_cmp_ge_u32 s2, 256")
    A("s_cbranch_scc1 L_end")
    if stamps or padto or pace: A("s_memrealtime s[92:93]")
    A("s_load_dwordx16 s[4:19], s[0:1], 0")
    A("v_lshrrev_b32 v1, 6, v0")
    A("v_and_b32 v0, 63, v0")
    A("v_readfirstlane_b32 s44, v1              ; wave")
    for i in range(4): A(f"v_mov_b32 v{8+i}, 0")
    A(f"ds_write_b128 v9, v[8:11] offset:{L_CTL}")
    if stamps:
        for i in range(16): A(f"s_mov_b32 s{70+i}, 0")
    A("s_and_b32 s20, s2, 1"); A("s_bfe_u32 s21, s2, 0x10001"); A("s_bfe_u32 s22, s2, 0x10002"); A("s_lshr_b32 s23, s2, 3")
    A("s_lshl1_add_u32 s45, s22, s20            ; split")
    A("s_and_b32 s24, s20, s23"); A("s_xor_b32 s21, s21, s24")
    A("s_lshl1_add_u32 s46, s23, s21")
    A("s_lshl2_add_u32 s47, s46, s45")
    if pmode == 'c':
        A("s_bfe_u32 s24, s46, 0x10003"); A("s_lshl_b32 s24, s24, 1")
    elif pmode == 'a': A("s_mov_b32 s24, 0")
    elif pmode == 'b': A("s_mov_b32 s24, 2")
    elif pmode == 'd':
        A("s_bfe_u32 s24, s46, 0x10003"); A("s_lshl_b32 s24, s24, 1"); A("s_xor_b32 s24, s24, 3")
    elif pmode == 'e':
        A("s_bfe_u32 s24, s46, 0x20003")
    elif pmode == 'f':
        A("s_and_b32 s24, s46, 1"); A("s_lshl_b32 s24, s24, 1")
    elif pmode == 'g':
        A("s_and_b32 s24, s46, 1"); A("s_xor_b32 s24, s24, 1"); A("s_lshl_b32 s24, s24, 1")
    A("s_cmp_eq_u32 s24, s45")
    A("s_cselect_b32 s43, 1, 0                  ; q producer flag")
    A("s_lshl_b32 s52, s46, 8")
    A(f"s_add_u32 s52, s52, {CNT_OFF}")
    A("v_lshlrev_b32 v2, 4, v0")
    A("v_lshrrev_b32 v3, 4, v0")
    A("v_bfe_u32 v4, v0, 2, 2")
    A("v_and_b32 v5, 3, v0")
    if not lateA:
        A("s_waitcnt lgkmcnt(0)")
        if stamps: A("s_mov_b32 s85, s92")
        A("s_barrier                                ; A")
    A("s_cmp_ge_u32 s44, 4")
    A("s_cbranch_scc1 L_helper")
    C("---------------- stream waves ----------------")
    RING = 64
    def R(n, lo=0, cnt=4): return f"v[{RING+4*n+lo}:{RING+4*n+lo+cnt-1}]"
    QV, DB, AS, AC1, AC2 = 12, 16, 32, 40, 44
    X, T0, T1, PL, PH, MRUN, LRUN, SC, TK = 48, 49, 50, 51, 52, 54, 55, 56, 57
    STEP = 65536
    A("v_lshlrev_b32 v1, 6, v3")
    A("v_lshl_add_u32 v1, v4, 8, v1")
    A("v_lshl_add_u32 v1, v5, 4, v1")
    A("s_lshl_b32 s56, s46, 21")
    A("s_lshl2_add_u32 s57, s45, s44")
    A("s_lshl_b32 s57, s57, 12")
    A("s_add_u32 s48, s56, s57")
    if lateA:
        A("s_mov_b32 s34, 0x8000000"); A("s_mov_b32 s35, 0x20000"); A("s_mov_b32 s38, 0x8000000"); A("s_mov_b32 s39, 0x20000")
        A("s_waitcnt lgkmcnt(0)")
        A("s_mov_b64 s[32:33], s[6:7]"); A("s_mov_b64 s[36:37], s[8:9]")
    else:
        srd(32, 6, "0x8000000")
        srd(36, 8, "0x8000000")
    A("s_cmp_eq_u32 s43, 0")
    A("s_cbranch_scc1 L_go")
    def ld(slot, p, soff):
        if p < 4: A(f"buffer_load_dwordx4 {R(slot)}, v1, s[32:35], {soff} offen offset:{p*1024} nt")
        else:     A(f"buffer_load_dwordx4 {R(slot)}, v2, s[36:39], {soff} offen offset:{(p-4)*1024} nt")
    NT = NI0 + NL
    def fill(FF):
        for n in range(8 * NT):
            if n >= 8 * NI0 and n % 4 == 0: A(f"s_add_u32 m0, s62, {(n - 8*NI0) * 1024}")
            if n >= FF: A(f"s_waitcnt vmcnt({FF-1})")
            p = n % 8
            if n < 8 * NI0: ld(n, p, "s48")
            elif p < 4: A(f"buffer_load_dwordx4 v1, s[32:35], s48 offen offset:{p*1024} nt lds")
            else:       A(f"buffer_load_dwordx4 v2, s[36:39], s48 offen offset:{(p-4)*1024} nt lds")
            if n % 8 == 7: A(f"s_add_u32 s48, s48, {STEP}")
            if n == int(8 * NP) - 1:
                A("v_mov_b32 v10, 1")
                A(f"ds_write_b32 v9, v10 offset:{L_CTL+8}")
            if n == FF - 1:
                if lateA:
                    A("s_cmp_eq_u32 s43, 0"); A("s_cbranch_scc0 L_noA"); A("s_barrier                                ; A"); LAB("L_noA")
                srd(28, 18, "0x20000000")
                A(f"s_mov_b32 s59, {f32(math.log2(math.e))}")
                A(f"s_mov_b32 s57, {f32(128 ** -0.5)}")
                A(f"v_mov_b32 v{MRUN}, 0xff7fffff")
                A(f"v_mov_b32 v{LRUN}, 0")
                for i in range(8): A(f"v_mov_b32 v{AC1+i}, 0")
                for i in range(8): A(f"v_mov_b32 v{AS+i}, 0")
                A(f"s_mul_i32 s62, s44, {NL*8192}")
                A(f"s_add_u32 s62, s62, {L_BUF}")
                A("v_add_u32 v6, s62, v2")
                if DP:
                    A("s_lshl_b32 s55, s24, 14")
                    A("s_add_u32 s55, s55, s56")
                    A(f"s_add_u32 s55, s55, {(S - DP) * 65536}")
                C("addresses for the merge at the end")
                A("s_mul_i32 s58, s44, 2560")
                A("v_add_u32 v60, s58, v2")
                A("v_lshlrev_b32 v61, 3, v0")
                A("v_add_u32 v61, s58, v61                  ; own (m, l)")
                A("v_lshlrev_b32 v62, 8, v4")
                A("v_lshl_add_u32 v62, v5, 6, v62")
                A("v_lshl_add_u32 v62, v3, 4, v62")
                if split2:
                    A("s_lshl_b32 s58, s44, 2")
                    A("v_add_u32 v62, s58, v62")
                A("v_lshlrev_b32 v63, 3, v3")
                A("v_and_b32 v59, 15, v0")
                A("v_lshlrev_b32 v59, 4, v59")
                A("v_and_b32 v11, 1, v3")
                A("v_lshl_add_u32 v59, v11, 9, v59")
                A("v_lshrrev_b32 v11, 1, v3")
                A("v_lshl_add_u32 v59, v11, 13, v59")
                A("s_lshr_b32 s86, s47, 3"); A("s_lshl_b32 s86, s86, 14")
                A("s_and_b32 s87, s47, 7"); A("s_lshl_b32 s87, s87, 10"); A("s_add_u32 s86, s86, s87")
                A(f"s_add_u32 s86, s86, {OG_OFF}")
                if split2:
                    A("s_lshl_b32 s87, s44, 7"); A("s_add_u32 s86, s86, s87")
    if lateA: A("s_barrier                                ; A")
    ldsspin("L_go0", L_CTL, 4)
    if F0p:
        fill(F0p)
        A(f"s_waitcnt vmcnt({F0})")
        A("s_branch L_filled")
    LAB("L_go")
    fill(F0)
    LAB("L_filled")
    STAMP(0)
    A("s_barrier")
    A(f"ds_read_b128 v[{QV}:{QV+3}], v2 offset:{L_Q}")
    A(f"ds_read_b64 v[10:11], v9 offset:{L_CTL+16}")
    if pace: A(f"ds_read_b32 v8, v9 offset:{L_CTL+24}")
    A("s_waitcnt lgkmcnt(0)")
    if pace: A("v_readfirstlane_b32 s63, v8")
    A("v_readfirstlane_b32 s89, v10             ; tag")
    A("v_readfirstlane_b32 s91, v11")
    A("v_xor_b32 v59, v11, v59")
    STAMP(1)
    uid = [0]
    def lreduce():
        A("s_nop 0")
        A(f"v_add_f32_dpp v{LRUN}, v{LRUN}, v{LRUN} row_ror:4 {FULL}")
        A("s_nop 1")
        A(f"v_add_f32_dpp v{LRUN}, v{LRUN}, v{LRUN} row_ror:8 {FULL}")
        A(f"v_mov_b32 v{T1}, v{LRUN}"); A("s_nop 1")
        A(f"v_permlane16_swap_b32 v{LRUN}, v{T1}"); A(f"v_add_f32 v{LRUN}, v{LRUN}, v{T1}")
        A(f"v_mov_b32 v{T1}, v{LRUN}"); A("s_nop 1")
        A(f"v_permlane32_swap_b32 v{LRUN}, v{T1}"); A(f"v_add_f32 v{LRUN}, v{LRUN}, v{T1}")
        A(f"ds_write_b64 v61, v[{MRUN}:{LRUN}] offset:{L_OC+2048}")
    def item(base, waits, loads, last=False):
        u = uid[0]; uid[0] += 1
        if nocomp:
            for p in range(8):
                w = waits(p)
                if w is not None: A(f"s_waitcnt vmcnt({w})")
                loads(p)
            return
        def dpp3(t):
            d = DB + 4 * t
            var = f"row_mask:0xf bank_mask:{1<<t:#x}"
            A(f"v_add_f32_dpp v{X}, v{d+(t+1)%4}, v{d+t} row_ror:12 {var}")
            A(f"v_add_f32_dpp v{X}, v{d+(t+2)%4}, v{X} row_ror:8 {var}")
            A(f"v_add_f32_dpp v{X}, v{d+(t+3)%4}, v{X} row_ror:4 {var}")
        for p in range(4):
            w = waits(p)
            if w is not None: A(f"s_waitcnt vmcnt({w})")
            d = DB + 4 * p
            A(f"v_mfma_f32_16x16x32_bf16 v[{d}:{d+3}], {R(base+p)}, v[{QV}:{QV+3}], 0")
            loads(p)
        A("s_nop 4")
        dpp3(0); dpp3(1); dpp3(2); dpp3(3)
        A(f"v_cvt_pk_bf16_f32 v{X}, 0, v{X}")
        A(f"v_mul_f32 v{X}, s57, v{X}")
        A(f"v_cvt_pk_bf16_f32 v{X}, 0, v{X}")
        if skipmax:
            A(f"v_mul_f32 v{T0}, s59, v{X}")
            A(f"v_cmp_gt_f32 vcc, v{T0}, v{MRUN}")
            A(f"s_cbranch_vccz L_nors{u}")
            A(f"v_max_f32_dpp v{T0}, v{T0}, v{T0} row_ror:4 {FULL}")
        else:
            A("s_nop 1")
            A(f"v_max_f32_dpp v{T0}, v{X}, v{X} row_ror:4 {FULL}")
        A("s_nop 1")
        A(f"v_max_f32_dpp v{T0}, v{T0}, v{T0} row_ror:8 {FULL}")
        A(f"v_mov_b32 v{T1}, v{T0}"); A("s_nop 1")
        A(f"v_permlane16_swap_b32 v{T0}, v{T1}"); A(f"v_max_f32 v{T0}, v{T0}, v{T1}")
        A(f"v_mov_b32 v{T1}, v{T0}"); A("s_nop 1")
        A(f"v_permlane32_swap_b32 v{T0}, v{T1}"); A(f"v_max_f32 v{T0}, v{T0}, v{T1}")
        if not skipmax:
            A(f"v_mul_f32 v{T0}, s59, v{T0}")
            A(f"v_cmp_gt_f32 vcc, v{T0}, v{MRUN}")
            A(f"s_cbranch_vccz L_nors{u}")
        A(f"v_max_f32 v{T0}, v{T0}, v{MRUN}")
        A(f"v_sub_f32 v{SC}, v{MRUN}, v{T0}")
        A(f"v_exp_f32 v{SC}, v{SC}")
        A(f"v_mov_b32 v{MRUN}, v{T0}")
        A(f"v_mul_f32 v{LRUN}, v{LRUN}, v{SC}")
        for i in range(8): A(f"v_mul_f32 v{AC1+i}, v{AC1+i}, v{SC}")
        LAB(f"L_nors{u}")
        A(f"v_fma_f32 v{X}, v{X}, s59, -v{MRUN}")
        A(f"v_exp_f32 v{X}, v{X}")
        A("s_nop 0")
        A(f"v_cvt_pk_bf16_f32 v{PL}, v{X}, 0")
        A(f"v_cvt_pk_bf16_f32 v{PH}, 0, v{X}")
        A(f"v_add_f32 v{LRUN}, v{LRUN}, v{X}")
        def ab(t):
            a = AS + 2 * t
            for jb in range(4):
                src = PL if jb % 2 == 0 else PH
                rot = (4 * (jb - t)) % 16
                ctl = f"row_ror:{rot}" if rot else "quad_perm:[0,1,2,3]"
                A(f"v_mov_b32_dpp v{a + jb//2}, v{src} {ctl} row_mask:0xf bank_mask:{1<<jb:#x}")
        ab(0); ab(1)
        for t in range(4):
            p = 4 + t
            if last and early and t == 3: lreduce()
            w = waits(p)
            if w is not None: A(f"s_waitcnt vmcnt({w})")
            a = AS + 2 * t
            A(f"v_mfma_f32_16x16x16_bf16 v[{AC1}:{AC1+3}], {R(base+p,0,2)}, v[{a}:{a+1}], v[{AC1}:{AC1+3}]")
            A(f"v_mfma_f32_16x16x16_bf16 v[{AC2}:{AC2+3}], {R(base+p,2,2)}, v[{a}:{a+1}], v[{AC2}:{AC2+3}]")
            loads(p)
            if t + 2 < 4: ab(t + 2)
    C("catch-up over the buffered items")
    nre = [0]
    def rel(base):
        def f(p):
            ld(base + p, p, "s48"); nre[0] += 1
            if p == 7 and base == 0 and nre[0] == 8: A(f"s_add_u32 s48, s48, {STEP}")
        return f
    def wt(i):
        def f(p):
            rest = 8 * NT - 1 - (8 * i + p)
            return rest + nre[0] if rest < F0 else None
        return f
    for i in range(NI0):
        lo = rel(8 * i) if i < 2 else (lambda p: None)
        item(8 * i, wt(i), lo)
        j = i - 2
        if i >= 2 and j < NL:
            rest = 8 * NT - 1 - (8 * (NI0 + j) + 7)
            if rest < F0 and j < NL - 1: A(f"s_waitcnt vmcnt({rest + nre[0]})")
            if j < NL - 1 or rest >= F0:
                for p in range(8): A(f"ds_read_b128 {R(8*i+p)}, v6 offset:{j*8192 + p*1024}")
    for j in range(NL):
        g = j + 2
        if j == NL - 1:
            A(f"s_waitcnt vmcnt({nre[0]})")
            for p in range(8): A(f"ds_read_b128 {R(8*g+p)}, v6 offset:{j*8192 + p*1024}")
        A("s_waitcnt lgkmcnt(0)")
        item(8 * g, lambda p: None, lambda p: None)
    nxt = NT + 2
    if F1:
        npair = (S - 2 - nxt) // 2
        A(f"s_mov_b32 s60, {npair}")
        if DP:
            assert DP % 2 == 0
            A(f"s_mul_i32 s58, s43, {DP // 2}")
            A("s_sub_u32 s60, s60, s58")
        def pairloop(lab, F):
            LAB(lab)
            A(f"s_add_u32 s48, s48, {STEP}")
            item(0, lambda p: F - 1, lambda p: ld(p, p, "s48"))
            A(f"s_add_u32 s48, s48, {STEP}")
            item(8, lambda p: F - 1, lambda p: ld(8 + p, p, "s48"))
            A("s_sub_u32 s60, s60, 1")
            A("s_cmp_lg_u32 s60, 0")
            A(f"s_cbranch_scc1 {lab}")
        if pace:
            tau, t0, thr, Fs = pace
            C("Bandwidth share control: a wave's share of HBM bandwidth follows the number of loads it keeps in flight.")
            C("Each pair of items picks its prefetch depth from how far the wave is behind or ahead of the common")
            C("schedule, so that all CUs reach the end of their fixed items together (no waiting, only the depth changes).")
            A(f"s_add_u32 s63, s63, {t0 + tau * nxt // 2}")
            LAB("L_pace")
            A("s_memrealtime s[64:65]")
            A("s_waitcnt lgkmcnt(0)")
            A("s_sub_u32 s64, s64, s63")
            A(f"s_add_u32 s63, s63, {tau}")
            ths = thr if isinstance(thr, (list, tuple)) else (-thr, thr)
            assert len(ths) == len(Fs) - 1
            for lv, th in enumerate(ths):
                A(f"s_cmp_lt_i32 s64, {th}")
                A(f"s_cbranch_scc1 L_p{lv}")
            order = [len(Fs) - 1] + list(range(len(Fs) - 1))
            for idx, lv in enumerate(order):
                F = Fs[lv]
                LAB(f"L_p{lv}")
                A(f"s_add_u32 s48, s48, {STEP}")
                item(0, lambda p: F - 1, lambda p: ld(p, p, "s48"))
                A(f"s_add_u32 s48, s48, {STEP}")
                item(8, lambda p: F - 1, lambda p: ld(8 + p, p, "s48"))
                A("s_sub_u32 s60, s60, 1")
                A("s_cmp_lg_u32 s60, 0")
                A("s_cbranch_scc1 L_pace")
                if idx != len(order) - 1: A("s_branch L_pairx")
        else:
            if F1p:
                if fsel == 'prod': A("s_cmp_eq_u32 s43, 0")
                elif fsel == 'odd': A("s_cmp_eq_u32 s20, 0")
                else: A("s_or_b32 s58, s43, s20"); A("s_cmp_eq_u32 s58, 0")
                A("s_cbranch_scc1 L_pair")
                pairloop("L_pairp", F1p)
                A("s_branch L_pairx")
            pairloop("L_pair", F1)
        LAB("L_pairx")
        nxt += 2 * npair
    A(f"s_add_u32 s48, s48, {STEP}")
    item(0, lambda p: (F1 - 1 if F1 else 15), lambda p: ld(p, p, "s48"))
    item(8, lambda p: 15 - p, lambda p: None)
    A(f"s_mov_b32 s60, {nxt}")
    STAMP(2)
    C("steady loop: slots 0..7 hold item s60; fixed items first, then tickets from the page pool")
    LAB("L_loop")
    A("s_add_u32 s60, s60, 1")
    A(f"s_cmp_lt_u32 s60, {S}")
    A("s_cbranch_scc0 L_dyn")
    A(f"s_add_u32 s48, s48, {STEP}")
    A(f"s_cmp_lt_u32 s60, {S-1}")
    A("s_cbranch_scc1 L_body")
    A("s_branch L_claim")
    LAB("L_dyn")
    A("s_waitcnt vmcnt(8)")
    LAB("L_tk")
    A(f"v_readfirstlane_b32 s61, v{TK}")
    A("s_bitcmp1_b32 s61, 0")
    A("s_cbranch_scc0 L_tkwait")
    A(f"s_cmp_lt_u32 s61, {2*(512 - 16*S + 4*DP)}")
    A("s_cbranch_scc0 L_last")
    if DP:
        C("the first tickets are the fixed slots the q producer of the page leaves out")
        A("s_lshr_b32 s58, s61, 3")
        A("s_lshl_b32 s58, s58, 16")
        A("s_bfe_u32 s48, s61, 0x20001")
        A("s_lshl_b32 s48, s48, 12")
        A("s_add_u32 s48, s48, s58")
        A("s_add_u32 s48, s48, s55")
        A(f"s_cmp_lt_u32 s61, {8*DP}")
        A("s_cbranch_scc1 L_claim")
    A(f"s_add_u32 s61, s61, {32*S - 1 - 8*DP}")
    A("s_lshl_b32 s61, s61, 11")
    A("s_add_u32 s48, s56, s61")
    LAB("L_claim")
    A(f"v_mov_b32 v{TK}, 2")
    A("s_mov_b64 exec, 1")
    A(f"buffer_atomic_add v{TK}, v9, s[28:31], s52 offen sc0 sc1")
    A("s_mov_b64 exec, -1")
    LAB("L_body")
    item(0, lambda p: 7, lambda p: ld(p, p, "s48"))
    A("s_branch L_loop")
    LAB("L_last")
    STAMP(3)
    if stamps: A("s_mov_b32 s81, s61")
    ldsinc(L_CTL + 12)
    item(0, lambda p: 7 - p, lambda p: None, last=True)
    STAMP(4)
    if stamps: A("s_mov_b32 s80, s60")
    if early: A("s_nop 6")
    else: lreduce()
    A(f"ds_write_b128 v60, v[{AC1}:{AC1+3}] offset:{L_OC}")
    A(f"ds_write_b128 v60, v[{AC2}:{AC2+3}] offset:{L_OC+1024}")
    A("s_waitcnt lgkmcnt(0)")
    A("s_barrier                                ; C")
    if notail: A("s_branch L_fin")
    if split2: A("s_bitcmp1_b32 s44, 0"); A("s_cbranch_scc1 L_s13")
    else: A("s_cmp_eq_u32 s44, 0"); A("s_cbranch_scc0 L_s13")
    C("merge the four waves and publish the partial")
    for w in range(4):
        A(f"ds_read_b64 v[{16+2*w}:{17+2*w}], v63 offset:{L_OC+w*2560+2048}")
    if split2:
        for w in range(4):
            A(f"ds_read_b64 v[{64+4*w}:{65+4*w}], v62 offset:{L_OC+w*2560}")
            A(f"ds_read_b64 v[{66+4*w}:{67+4*w}], v62 offset:{L_OC+w*2560+1024}")
    else:
        for w in range(4):
            A(f"ds_read_b128 v[{64+8*w}:{67+8*w}], v62 offset:{L_OC+w*2560}")
            A(f"ds_read_b128 v[{68+8*w}:{71+8*w}], v62 offset:{L_OC+w*2560+1024}")
    A("s_waitcnt lgkmcnt(8)")
    A("v_max3_f32 v24, v16, v18, v20")
    A("v_max_f32 v24, v24, v22")
    for w in range(4): A(f"v_sub_f32 v{16+2*w}, v{16+2*w}, v24")
    for w in range(4): A(f"v_exp_f32 v{16+2*w}, v{16+2*w}")
    A("s_nop 0")
    A("v_mul_f32 v25, v16, v17")
    A("v_mul_f32 v27, v20, v21")
    A("v_fmac_f32 v25, v18, v19")
    A("v_fmac_f32 v27, v22, v23")
    A("v_add_f32 v25, v25, v27")
    A("v_rcp_f32 v26, v25")
    A("v_log_f32 v42, v25")
    A("s_waitcnt lgkmcnt(0)")
    if split2:
        for i in range(2): A(f"v_pk_mul_f32 v[{64+2*i}:{65+2*i}], v[{64+2*i}:{65+2*i}], v[16:17] op_sel_hi:[1,0]")
        for w in range(1, 4):
            for i in range(2): A(f"v_pk_fma_f32 v[{64+2*i}:{65+2*i}], v[{64+4*w+2*i}:{65+4*w+2*i}], v[{16+2*w}:{17+2*w}], v[{64+2*i}:{65+2*i}] op_sel_hi:[1,0,1]")
        A("v_add_f32 v42, v42, v24")
        for i in range(2): A(f"v_pk_mul_f32 v[{64+2*i}:{65+2*i}], v[{64+2*i}:{65+2*i}], v[26:27] op_sel_hi:[1,0]")
        A("v_xor_b32 v29, s89, v42")
        A("v_cvt_pk_bf16_f32 v40, v64, v66")
        A("v_cvt_pk_bf16_f32 v41, v65, v67")
        A("v_bitop3_b32 v43, v40, v41, v29 bitop3:0x96")
        A("buffer_store_dwordx4 v[40:43], v59, s[28:31], s86 offen sc1")
    else:
        for i in range(4): A(f"v_pk_mul_f32 v[{64+2*i}:{65+2*i}], v[{64+2*i}:{65+2*i}], v[16:17] op_sel_hi:[1,0]")
        for w in range(1, 4):
            for i in range(4): A(f"v_pk_fma_f32 v[{64+2*i}:{65+2*i}], v[{64+8*w+2*i}:{65+8*w+2*i}], v[{16+2*w}:{17+2*w}], v[{64+2*i}:{65+2*i}] op_sel_hi:[1,0,1]")
        A("v_add_f32 v42, v42, v24")
        for i in range(4): A(f"v_pk_mul_f32 v[{64+2*i}:{65+2*i}], v[{64+2*i}:{65+2*i}], v[26:27] op_sel_hi:[1,0]")
        A("v_mov_b32 v46, v42")
        A("v_xor_b32 v29, s89, v42")
        A("v_cvt_pk_bf16_f32 v40, v64, v68")
        A("v_cvt_pk_bf16_f32 v41, v65, v69")
        A("v_cvt_pk_bf16_f32 v44, v66, v70")
        A("v_cvt_pk_bf16_f32 v45, v67, v71")
        A("v_bitop3_b32 v43, v40, v41, v29 bitop3:0x96")
        A("v_bitop3_b32 v47, v44, v45, v29 bitop3:0x96")
        A("buffer_store_dwordx4 v[40:43], v59, s[28:31], s86 offen sc1")
        A("buffer_store_dwordx4 v[44:47], v59, s[28:31], s86 offen offset:256 sc1")
    if d2: A("s_waitcnt vmcnt(0)")
    A("s_barrier                                ; D")
    STAMP(5)
    if stamps:
        A("s_barrier")
        if not tdel: A("s_barrier")
    A("s_branch L_fin")
    LAB("L_tkwait")
    A("s_waitcnt vmcnt(0)")
    A(f"v_or_b32 v{TK}, 1, v{TK}")
    A("s_nop 0")
    A("s_branch L_tk")
    LAB("L_s13")
    A("s_cmp_eq_u32 s44, 1")
    if stamps:
        A("s_cbranch_scc1 L_hop2")
        A("s_barrier"); A("s_barrier")
        if not tdel: A("s_barrier")
        A("s_branch L_fin")
        LAB("L_hop2")
    else:
        A("s_cbranch_scc0 L_fin")
    C("wave 1: sum the 32 contributions of 2 rows x 8 columns and write them out")
    srd(40, 14, "0x2000")
    A("s_and_b32 s88, s2, 7"); A("s_bfe_u32 s87, s2, 0x30003"); A("s_lshl3_add_u32 s88, s88, s87")
    A("s_lshr_b32 s87, s2, 6")
    A("s_lshl_b32 s86, s87, 6")
    A("s_add_u32 s86, s86, s88")
    A("s_bfe_u32 s64, s86, 0x10001"); A("s_bfe_u32 s65, s86, 0x10005"); A("s_andn2_b32 s86, s86, 0x22")
    A("s_lshl_b32 s64, s64, 5"); A("s_add_u32 s86, s86, s64"); A("s_lshl1_add_u32 s86, s65, s86")
    A("s_lshl_b32 s86, s86, 12")
    A("s_xor_b32 s86, s86, s91")
    A(f"s_add_u32 s86, s86, {Y_OFF}")
    A("s_lshl_b32 s87, s87, 11")
    A("s_lshl4_add_u32 s87, s88, s87")
    A("v_lshlrev_b32 v10, 1, v0")
    A("s_mov_b32 s88, 0")
    if pre2:
        for i in range(4):
            A(f"buffer_load_dwordx4 v[{16+4*i}:{19+4*i}], v2, s[28:31], s86 offen offset:{1024*i} sc1")
    A("s_barrier                                ; D")
    A("s_barrier")
    A("s_cmp_eq_u32 s2, 0")
    A("s_cbranch_scc0 L_noep")
    A("s_mov_b64 exec, 1")
    A("v_mov_b32 v17, s89")
    A("buffer_store_dword v17, v9, s[28:31], 0 offen sc1")
    A("s_mov_b64 exec, -1")
    LAB("L_noep")
    if tdel: A(f"s_sleep {tdel}")
    else: A("s_barrier                                ; F")
    LAB("L_h2poll")
    for i in range(4):
        A(f"buffer_load_dwordx4 v[{16+4*i}:{19+4*i}], v2, s[28:31], s86 offen offset:{1024*i} sc1")
    for i in range(4):
        A(f"s_waitcnt vmcnt({3-i})")
        r = 16 + 4 * i
        A(f"v_bitop3_b32 v{32+2*i}, v{r}, v{r+2}, s89 bitop3:0x96")
        A(f"v_bitop3_b32 v{33+2*i}, v{r+1}, v{r+3}, s89 bitop3:0x96")
        if i == 1: A("v_or3_b32 v32, v32, v33, v34")
        if i == 2: A("v_or3_b32 v35, v35, v36, v37")
    A("v_or3_b32 v32, v32, v38, v39")
    A("v_or_b32 v32, v32, v35")
    A("v_cmp_ne_u32 vcc, 0, v32")
    A("s_and_b64 exec, exec, vcc")
    A("s_cbranch_execz L_h2ok")
    A("s_add_u32 s88, s88, 1")
    A(f"s_cmp_gt_u32 s88, {spin}")
    A("s_cbranch_scc0 L_h2poll")
    LAB("L_h2ok")
    A("s_mov_b64 exec, -1")
    STAMP(6)
    if stamps: A("s_mov_b32 s83, s88")
    A("v_pk_add_f32 v[16:17], v[16:17], v[20:21]")
    A("v_pk_add_f32 v[24:25], v[24:25], v[28:29]")
    A("v_pk_add_f32 v[16:17], v[16:17], v[24:25]")
    A("s_nop 1")
    A(f"v_add_f32_dpp v16, v16, v16 row_ror:8 {FULL}")
    A(f"v_add_f32_dpp v17, v17, v17 row_ror:8 {FULL}")
    A("s_nop 1")
    C("rows 0/1 of v16 and v17 side by side: v16 = [a0, b0, a2, b2], v17 = [a1, b1, a3, b3]")
    A("v_permlane16_swap_b32 v16, v17")
    A("v_add_f32 v16, v16, v17")
    A("v_mov_b32 v18, v16"); A("s_nop 1")
    A("v_permlane32_swap_b32 v16, v18")
    A("v_add_f32 v16, v16, v18")
    A("v_cvt_pk_bf16_f32 v16, v16, v16")
    if padto:
        LAB("L_pad")
        A("s_memrealtime s[66:67]"); A("s_waitcnt lgkmcnt(0)"); A("s_sub_u32 s66, s66, s92")
        A(f"s_cmp_lt_u32 s66, {padto}"); A("s_cbranch_scc1 L_pad")
    A("s_mov_b32 exec_lo, 0x00ff00ff"); A("s_mov_b32 exec_hi, 0")
    A("buffer_store_short v16, v11, s[40:43], s87 offen")
    A("s_mov_b64 exec, -1")
    A("s_branch L_fin")

    C("---------------- helper waves ----------------")
    LAB("L_helper")
    if lateA:
        A("s_waitcnt lgkmcnt(0)")
        A("s_barrier                                ; A")
    A("s_setprio 3")
    A("s_load_dword s89, s[18:19], 0")
    A("s_sub_u32 s56, s44, 4")
    srd(28, 18, "0x20000000")
    A("s_and_b32 s40, s46, 7")
    A("s_lshr_b32 s41, s46, 3")
    A("s_cmp_eq_u32 s43, 0")
    A("s_cbranch_scc1 L_noprod")
    C("q producer: 64 columns for all batches; this wave: wq rows [128hw, +128)")
    srd(36, 10, "0" if nowq else "0x400000")
    A("s_lshl3_add_u32 s48, s40, s41")
    A("s_lshl_b32 s49, s48, 7")
    A("s_lshl_b32 s50, s56, 20")
    A("s_add_u32 s49, s49, s50")
    A("v_lshrrev_b32 v6, 3, v0")
    A("v_and_b32 v7, 7, v0")
    A("v_lshlrev_b32 v8, 13, v6")
    A("v_lshl_add_u32 v8, v7, 4, v8")
    A("v_and_b32 v11, 16, v0")
    A("v_lshlrev_b32 v11, 1, v11")
    A("v_xor_b32 v8, v8, v11")
    A("v_xor_b32 v11, 64, v8")
    A("s_lshl_b32 s50, s56, 14")
    A(f"s_add_u32 s50, s50, {L_STG}")
    for i in range(16):
        A(f"s_add_u32 m0, s50, {i*1024}")
        if i: A(f"s_add_u32 s49, s49, {8*8192}")
        else: A("s_nop 0")
        A(f"buffer_load_dwordx4 v{11 if i % 2 else 8}, s[36:39], s49 offen nt lds")
    srd(32, 4, "0x2000")
    A("v_lshlrev_b32 v11, 10, v7")
    A("v_lshl_add_u32 v11, v3, 4, v11")
    A("s_lshl_b32 s51, s56, 8")
    A("s_mov_b32 exec_lo, 0x00ff00ff"); A("s_mov_b32 exec_hi, 0x00ff00ff")
    for s in range(4):
        A(f"buffer_load_dwordx4 v[{96+4*s}:{99+4*s}], v11, s[32:35], s51 offen offset:{64*s}")
    A("s_mov_b64 exec, 1")
    A("v_mov_b32 v10, 1")
    A("buffer_store_dword v10, v9, s[28:31], s52 offen sc1")
    ldsinc(L_CTL)
    STAMP(3)
    A("v_lshl_add_u32 v12, v3, 3, v4")
    A("v_lshlrev_b32 v12, 7, v12")
    A("v_lshl_add_u32 v12, v5, 3, v12")
    A("v_add_u32 v12, s50, v12")
    A("v_bfe_u32 v17, v0, 3, 2")
    A("v_lshl_add_u32 v112, v17, 5, v12")
    for ct in range(1, 4): A(f"v_xor_b32 v{112+ct}, {32*ct}, v112")
    A("v_add_u32 v13, s50, v2")
    A("s_lshl_b32 s51, s56, 10")
    A("v_bfe_u32 v16, v0, 2, 3")
    A("v_lshlrev_b32 v14, 8, v5")
    A("v_lshl_add_u32 v14, v16, 4, v14")
    A("v_add_u32 v14, s51, v14")
    A("v_bfe_u32 v15, v0, 3, 2")
    A("v_lshlrev_b32 v15, 15, v15")
    A("v_lshl_add_u32 v15, v7, 4, v15")
    A("s_lshl2_add_u32 s48, s48, s56")
    A("s_lshl_b32 s48, s48, 7")
    A(f"s_add_u32 s48, s48, {QG_OFF}")
    A("s_waitcnt vmcnt(0) lgkmcnt(0)")
    STAMP(0)
    for ks in range(4):
        for ct in range(4):
            r = 128 + 16 * ks + 4 * ct
            A(f"ds_read_b64_tr_b16 v[{r}:{r+1}], v{112+ct} offset:{ks*4096}")
            A(f"ds_read_b64_tr_b16 v[{r+2}:{r+3}], v{112+ct} offset:{ks*4096 + 512}")
    for ks in range(4):
        for ct in range(4):
            rem = 2 * (15 - (4 * ks + ct))
            A(f"s_waitcnt lgkmcnt({min(rem, 15)})")
            r = 128 + 16 * ks + 4 * ct
            c = "0" if ks == 0 else f"v[{16+4*ct}:{19+4*ct}]"
            A(f"v_mfma_f32_16x16x32_bf16 v[{16+4*ct}:{19+4*ct}], v[{r}:{r+3}], v[{96+4*ks}:{99+4*ks}], {c}")
    A("s_nop 4")
    for ct in range(4):
        if ct: A("s_nop 0")
        A(f"ds_write_b128 v13, v[{16+4*ct}:{19+4*ct}] offset:{1024*ct}")
    A("s_waitcnt lgkmcnt(0)")
    ldsinc(L_CTL + 4)
    ldsspin("L_red", L_CTL + 4, 4)
    for w in range(4):
        A(f"ds_read_b128 v[{16+4*w}:{19+4*w}], v14 offset:{L_STG + 16384*w}")
    A("s_add_u32 s90, s89, 0x9e3779b1")
    A("s_or_b32 s90, s90, 1")
    A("s_waitcnt lgkmcnt(0)")
    for i in range(4):
        A(f"v_add_f32 v{16+i}, v{16+i}, v{20+i}")
        A(f"v_add_f32 v{24+i}, v{24+i}, v{28+i}")
    for i in range(4): A(f"v_add_f32 v{16+i}, v{16+i}, v{24+i}")
    A("v_cvt_pk_bf16_f32 v20, v16, v17")
    A("v_cvt_pk_bf16_f32 v21, v18, v19")
    A("v_xor_b32 v22, s90, v20")
    A("v_xor_b32 v23, s90, v21")
    A("s_mov_b32 exec_hi, 0")
    A("buffer_store_dwordx4 v[20:23], v15, s[28:31], s48 offen sc1")
    A("s_mov_b64 exec, -1")
    STAMP(1)
    LAB("L_noprod")
    A("s_waitcnt lgkmcnt(0)")
    A("s_add_u32 s89, s89, 0x9e3779b1")
    A("s_or_b32 s89, s89, 1")
    A("s_cmp_eq_u32 s56, 0")
    A("s_cbranch_scc1 L_h0")
    if probe:
        A("s_cmp_eq_u32 s56, 1")
        A("s_cbranch_scc1 L_h1")
        C("wave 7 of workgroup 1: which 8 KiB half of d_ws answers this die first (placement of the hand-off units, speed only)")
        A("s_lshl2_add_u32 s58, s2, s56")
        A("s_cmp_eq_u32 s58, 7")
        A("s_cbranch_scc0 L_hwaitB")
        A("s_mov_b32 s60, 0"); A("s_mov_b32 s61, 0")
        for t in range(2 * nprb):
            first = t % 2
            A(f"s_load_dword s50, s[18:19], {PRB_OFF + first*8192 + t*256}")
            A(f"s_load_dword s51, s[18:19], {PRB_OFF + (1-first)*8192 + t*256}")
            A("s_waitcnt lgkmcnt(1)")
            A("s_memtime s[62:63]")
            A("s_waitcnt lgkmcnt(0)")
            A("s_memtime s[64:65]")
            A("s_waitcnt lgkmcnt(0)")
            A("s_sub_u32 s54, s64, s62")
            A("s_min_u32 s54, s54, 400")
            A(f"s_add_u32 s{60+first}, s{60+first}, s54")
        if stamps: A("s_mov_b32 s80, s60"); A("s_mov_b32 s81, s61")
        A("s_cmp_gt_u32 s61, s60")
        A("s_cselect_b32 s60, 0x2000, 0")
        if pace:
            A("s_andn2_b32 s61, s92, 1"); A("s_lshr_b32 s60, s60, 13"); A("s_or_b32 s60, s60, s61")
        A("s_xor_b32 s61, s60, s89")
        A("v_mov_b32 v16, s60"); A("v_mov_b32 v17, s61")
        A("s_mov_b64 exec, 1")
        A(f"buffer_store_dwordx2 v[16:17], v9, s[28:31], 0 offen offset:{CFG_OFF} sc1")
        A("s_mov_b64 exec, -1")
        A("s_branch L_hwaitB")
        LAB("L_h1")
        ldsspin("L_prog1", L_CTL + 8, 1, sleep=2)
        A("s_mov_b32 s54, 0")
        A("s_mov_b64 exec, 1")
        LAB("L_cpoll")
        A(f"buffer_load_dwordx2 v[16:17], v9, s[28:31], 0 offen offset:{CFG_OFF} sc1")
        A("s_waitcnt vmcnt(0)")
        A("v_xor_b32 v18, v16, v17")
        A("v_cmp_ne_u32 vcc, s89, v18")
        A("s_cbranch_vccz L_cok")
        A("s_add_u32 s54, s54, 1")
        A(f"s_cmp_gt_u32 s54, {spin}")
        A("s_cbranch_scc0 L_cpoll")
        LAB("L_cok")
        if pace:
            A(f"ds_write_b32 v9, v16 offset:{L_CTL+24}")
            A("v_lshlrev_b32 v16, 13, v16")
        A("v_and_b32 v16, 0x2000, v16")
        A(f"ds_write_b32 v9, v16 offset:{L_CTL+20}")
        A("s_mov_b64 exec, -1")
        A("s_waitcnt lgkmcnt(0)")
    A("s_branch L_hwaitB")
    LAB("L_h0")
    C("wave 4: fetch q of the page")
    A("v_lshlrev_b32 v14, 10, v5")
    A("v_lshl_add_u32 v14, v3, 8, v14")
    A("v_lshrrev_b32 v15, 1, v4")
    A("v_lshl_add_u32 v14, v15, 7, v14")
    A("v_and_b32 v15, 1, v4")
    A("v_lshl_add_u32 v14, v15, 5, v14")
    A("s_lshr_b32 s53, s41, 1")
    A("s_lshl_b32 s53, s53, 15")
    A("s_lshl_b32 s54, s40, 12")
    A("s_add_u32 s53, s53, s54")
    A("s_and_b32 s54, s41, 1")
    A("s_lshl_b32 s54, s54, 6")
    A("s_add_u32 s53, s53, s54")
    A(f"s_add_u32 s53, s53, {QG_OFF}")
    A("v_mov_b32 v11, s89")
    A(f"ds_write_b32 v9, v11 offset:{L_CTL+16}")
    if not probe:
        A(f"v_mov_b32 v11, {cfix << 13}")
        A(f"ds_write_b32 v9, v11 offset:{L_CTL+20}")
    ldsspin("L_prog", L_CTL + 8, 1, sleep=2)
    A("s_mov_b32 s54, 0")
    LAB("L_qpoll")
    A("buffer_load_dwordx4 v[24:27], v14, s[28:31], s53 offen sc1")
    A("buffer_load_dwordx4 v[28:31], v14, s[28:31], s53 offen offset:16 sc1")
    A("s_waitcnt vmcnt(0)")
    A("v_bitop3_b32 v32, v24, v26, s89 bitop3:0x96")
    A("v_bitop3_b32 v33, v25, v27, s89 bitop3:0x96")
    A("v_bitop3_b32 v34, v28, v30, s89 bitop3:0x96")
    A("v_bitop3_b32 v35, v29, v31, s89 bitop3:0x96")
    A("v_or3_b32 v36, v32, v33, v34")
    A("v_or_b32 v36, v36, v35")
    A("v_cmp_ne_u32 vcc, 0, v36")
    A("s_and_b64 exec, exec, vcc")
    A("s_cbranch_execz L_qok")
    A("s_add_u32 s54, s54, 1")
    A(f"s_cmp_gt_u32 s54, {spin}")
    A("s_cbranch_scc0 L_qpoll")
    LAB("L_qok")
    A("s_mov_b64 exec, -1")
    A(f"ds_write_b64 v2, v[24:25] offset:{L_Q}")
    A(f"ds_write_b64 v2, v[28:29] offset:{L_Q+8}")
    if stamps: A("s_mov_b32 s82, s54")
    A("s_waitcnt lgkmcnt(0)")
    STAMP(2)
    LAB("L_hwaitB")
    A("s_barrier                                ; B")
    A("s_setprio 0")
    A(f"ds_read_b32 v17, v9 offset:{L_CTL+20}")
    C("output projection role: 16 rows of one head of every kv group (chunk G), 64 columns c8;")
    C("this wave merges batches 2hw, 2hw+1 and multiplies the 16-column tile hw")
    srd(36, 12, "0" if nowo else "0x400000")
    A("s_and_b32 s59, s2, 7"); A("s_bfe_u32 s60, s2, 0x20003"); A("s_lshl2_add_u32 s59, s59, s60   ; G")
    A("s_lshr_b32 s60, s2, 5                    ; c8")
    A("s_lshr_b32 s48, s59, 3")
    A("s_lshl3_add_u32 s48, s56, s48")
    A("s_lshl_b32 s48, s48, 17")
    A("s_and_b32 s50, s59, 3")
    A("s_lshl_b32 s50, s50, 15")
    A("s_add_u32 s48, s48, s50")
    A("s_bfe_u32 s50, s59, 0x10002")
    A("s_lshl_b32 s50, s50, 14")
    A("s_add_u32 s48, s48, s50")
    A("s_lshl_b32 s50, s60, 7")
    A("s_add_u32 s48, s48, s50")
    A("v_bfe_u32 v6, v0, 3, 1")
    A("v_lshlrev_b32 v6, 11, v6")
    A("v_bfe_u32 v7, v0, 4, 1")
    A("v_lshl_add_u32 v6, v7, 10, v6")
    A("v_bfe_u32 v7, v0, 5, 1")
    A("v_lshl_add_u32 v6, v7, 12, v6")
    A("v_and_b32 v11, 7, v0")
    A("v_lshlrev_b32 v11, 4, v11")
    A("v_lshlrev_b32 v7, 5, v7")
    A("v_xor_b32 v11, v11, v7")
    A("v_add_u32 v7, v6, v11")
    A("v_xor_b32 v6, 64, v7")
    A("s_lshl_b32 s49, s56, 12")
    A(f"s_add_u32 s49, s49, {L_STG}")
    A("v_lshrrev_b32 v8, 1, v3")
    A("v_lshlrev_b32 v8, 4, v8")
    A("v_and_b32 v11, 1, v3")
    A("v_add_u32 v8, v8, v11")
    A("v_lshl_add_u32 v8, v4, 2, v8")
    A("v_lshlrev_b32 v8, 7, v8")
    A("v_lshl_add_u32 v8, v5, 3, v8")
    A("v_xor_b32 v11, s56, v4")
    A("v_lshl_add_u32 v8, v11, 5, v8")
    A("s_waitcnt lgkmcnt(0)")
    A("v_readfirstlane_b32 s91, v17")
    A("v_lshrrev_b32 v11, 5, v0")
    A("v_and_b32 v13, 31, v0")
    A("v_lshlrev_b32 v12, 16, v11")
    A("v_bfe_u32 v16, v0, 3, 2"); A("v_lshl_add_u32 v12, v16, 14, v12")
    A("v_bfe_u32 v16, v0, 2, 1"); A("v_lshl_add_u32 v12, v16, 12, v12")
    A("v_lshl_add_u32 v12, v5, 4, v12")
    A("s_lshl_b32 s53, s56, 17")
    A("s_and_b32 s54, s59, 15"); A("s_lshl_b32 s54, s54, 6"); A("s_add_u32 s53, s53, s54")
    A("s_lshr_b32 s54, s59, 4"); A("s_lshl_b32 s54, s54, 13"); A("s_add_u32 s53, s53, s54")
    A("s_xor_b32 s53, s53, s91")
    A(f"s_add_u32 s53, s53, {OG_OFF}")
    A("s_mul_i32 s51, s56, 544")
    A("v_mul_u32_u24 v11, 272, v11")
    A("v_lshl_add_u32 v13, v13, 3, v11")
    A("v_add_u32 v13, s51, v13")
    A("v_and_b32 v15, 1, v0")
    A("v_lshl_add_u32 v15, v4, 1, v15")
    A("v_mul_u32_u24 v15, 272, v15")
    A("v_lshl_add_u32 v15, v3, 4, v15")
    A("v_bfe_u32 v16, v0, 3, 1")
    A("v_lshl_add_u32 v14, v3, 6, v16")
    A("v_lshlrev_b32 v14, 12, v14")
    A("v_and_b32 v11, 7, v0")
    A("v_lshl_add_u32 v14, v11, 4, v14")
    A("s_lshl2_add_u32 s55, s60, s56")
    A("s_lshl_b32 s64, s55, 1")
    A("s_and_b32 s64, s64, 31")
    A("s_xor_b32 s64, s64, s59")
    A("v_xor_b32 v16, s64, v16")
    A("v_lshl_add_u32 v14, v16, 7, v14")
    A("s_and_b32 s64, s55, 1"); A("s_bfe_u32 s65, s55, 0x10004"); A("s_andn2_b32 s55, s55, 0x11")
    A("s_lshl4_add_u32 s55, s64, s55"); A("s_add_u32 s55, s55, s65")
    A("s_lshl_b32 s55, s55, 13")
    A("s_xor_b32 s55, s55, s91")
    A(f"s_add_u32 s55, s55, {Y_OFF}")
    A("s_mov_b32 s63, 0xffff0000")
    A("s_mov_b32 s61, 0")
    ldsspin("L_wol", L_CTL + 12, 4, sleep=3)
    for i in range(4):
        A(f"s_add_u32 m0, s49, {i*1024}")
        A("s_nop 0")
        A(f"buffer_load_dwordx4 v{6 if i % 2 else 7}, s[36:39], s48 offen nt lds")
        A(f"s_add_u32 s48, s48, {524288 - 8192 if i == 1 else 8192}")
    STAMP(5)
    if hprio: A(f"s_setprio {hprio}")
    A("s_barrier                                ; C")
    if notail: A("s_branch L_fin")
    if wpre: A("s_waitcnt vmcnt(0)")
    A("s_barrier                                ; D")
    if wpre:
        for f in range(4):
            r = 96 + 4 * f
            A(f"ds_read_b64_tr_b16 v[{r}:{r+1}], v8 offset:{L_STG + 32*f*128}")
            A(f"ds_read_b64_tr_b16 v[{r+2}:{r+3}], v8 offset:{L_STG + (32*f+2)*128}")
    STAMP(6)
    if d1: A(f"s_sleep {d1}")
    LAB("L_h1poll")
    for sp in range(4):
        r = 32 + 4 * sp
        A(f"buffer_load_dwordx4 v[{r}:{r+3}], v12, s[28:31], s53 offen offset:{1024*sp} sc1")
    for sp in range(4):
        r = 32 + 4 * sp
        A(f"s_waitcnt vmcnt({3-sp})")
        A(f"v_bitop3_b32 v{48+sp}, v{r}, v{r+1}, v{r+2} bitop3:0x96")
        A(f"v_bitop3_b32 v{48+sp}, v{48+sp}, v{r+3}, s89 bitop3:0x96")
        if sp == 2: A("v_or3_b32 v48, v48, v49, v50")
    A("v_or_b32 v48, v48, v51")
    A("v_cmp_ne_u32 vcc, 0, v48")
    A("s_and_b64 exec, exec, vcc")
    A("s_cbranch_execz L_h1ok")
    A("s_add_u32 s61, s61, 1")
    A(f"s_cmp_gt_u32 s61, {spin}")
    A("s_cbranch_scc0 L_h1poll")
    LAB("L_h1ok")
    A("s_mov_b64 exec, -1")
    STAMP(7)
    if stamps: A("s_mov_b32 s83, s61")
    A("v_max3_f32 v52, v34, v38, v42")
    A("v_max_f32 v52, v52, v46")
    for sp in range(4): A(f"v_sub_f32 v{48+sp}, v{34+4*sp}, v52")
    for sp in range(4):
        r = 32 + 4 * sp
        A(f"v_exp_f32 v{48+sp}, v{48+sp}")
        A(f"v_and_b32 v{r+2}, s63, v{r}")
        A(f"v_and_b32 v{r+3}, s63, v{r+1}")
        A(f"v_lshlrev_b32 v{r}, 16, v{r}")
        A(f"v_lshlrev_b32 v{r+1}, 16, v{r+1}")
    A("v_add_f32 v52, v48, v49")
    A("v_add_f32 v53, v50, v51")
    A("v_add_f32 v52, v52, v53")
    A("v_rcp_f32 v52, v52")
    for h2 in range(2):
        A(f"v_pk_mul_f32 v[{32+2*h2}:{33+2*h2}], v[{32+2*h2}:{33+2*h2}], v[48:49] op_sel_hi:[1,0]")
    for sp in range(1, 4):
        w = 48 + (sp & ~1)
        sel = "op_sel:[0,1,0] op_sel_hi:[1,1,1]" if sp % 2 else "op_sel_hi:[1,0,1]"
        for h2 in range(2):
            A(f"v_pk_fma_f32 v[{32+2*h2}:{33+2*h2}], v[{32+4*sp+2*h2}:{33+4*sp+2*h2}], v[{w}:{w+1}], v[{32+2*h2}:{33+2*h2}] {sel}")
    for h2 in range(2):
        A(f"v_pk_mul_f32 v[{32+2*h2}:{33+2*h2}], v[{32+2*h2}:{33+2*h2}], v[52:53] op_sel_hi:[1,0]")
    A("v_cvt_pk_bf16_f32 v36, v32, v34")
    A("v_cvt_pk_bf16_f32 v37, v33, v35")
    A(f"ds_write_b64 v13, v[36:37] offset:{L_OI}")
    A("s_waitcnt lgkmcnt(0)")
    A("s_barrier                                ; E")
    for f in range(4):
        r = 96 + 4 * f
        if not wpre:
            A(f"ds_read_b64_tr_b16 v[{r}:{r+1}], v8 offset:{L_STG + 32*f*128}")
            A(f"ds_read_b64_tr_b16 v[{r+2}:{r+3}], v8 offset:{L_STG + (32*f+2)*128}")
        A(f"ds_read_b128 v[{32+4*f}:{35+4*f}], v15 offset:{L_OI + 64*f}")
    for f in range(4):
        A(f"s_waitcnt lgkmcnt({3-f if wpre else 9-3*f})")
        c = "0" if f == 0 else "v[68:71]"
        A(f"v_mfma_f32_16x16x32_bf16 v[68:71], v[{32+4*f}:{35+4*f}], v[{96+4*f}:{99+4*f}], {c}")
    A("s_nop 7")
    A("v_xor_b32 v70, s89, v68"); A("v_xor_b32 v71, s89, v69")
    A("buffer_store_dwordx4 v[68:71], v14, s[28:31], s55 offen sc1")
    if not tdel:
        A("s_waitcnt vmcnt(0)")
        A("s_barrier                                ; F")
    STAMP(8)
    LAB("L_fin")
    if stamps:
        A("s_waitcnt vmcnt(0)")
        STAMP(9)
        A("s_lshl_b32 s48, s2, 3")
        A("s_add_u32 s48, s48, s44")
        A("s_lshl_b32 s48, s48, 6")
        A(f"s_add_u32 s48, s48, {ST_OFF}")
        A("v_mov_b32 v1, 0")
        A("s_mov_b64 exec, 1")
        for q in range(4):
            for i in range(4): A(f"v_mov_b32 v{12+i}, s{70+4*q+i}")
            A(f"buffer_store_dwordx4 v[12:15], v1, s[28:31], s48 offen offset:{16*q}")
            A("s_nop 1")
    LAB("L_end")
    A("s_endpgm")
    nv = max(192, RING + 32 * NI0)
    L.append('.section .rodata,"a"\n.p2align 6')
    L.append(f".amdhsa_kernel {KN}")
    L.append(f"  .amdhsa_next_free_vgpr {nv}\n  .amdhsa_next_free_sgpr 96\n  .amdhsa_accum_offset {nv}")
    L.append("  .amdhsa_group_segment_fixed_size 0\n  .amdhsa_kernarg_size 64\n  .amdhsa_float_denorm_mode_32 3")
    L.append("  .amdhsa_user_sgpr_count 2\n  .amdhsa_user_sgpr_kernarg_segment_ptr 1\n  .amdhsa_system_sgpr_workgroup_id_x 1")
    L.append(".end_amdhsa_kernel")
    txt = "\n".join(L) + "\n"
    txt = txt.replace("  v_lshlrev_b32 v10, 1, v0\n  s_mov_b32 s88, 0\n", "  v_and_b32 v11, 7, v0\n  v_lshlrev_b32 v11, 1, v11\n  v_lshl_add_u32 v11, v3, 10, v11\n  s_mov_b32 s88, 0\n")
    open(name, "w").write(txt)
```
